```python
import torch

def _softmax(x, axis=-1):
    return torch.softmax(x, dim=axis)
def _gelu(x):
    return torch.nn.functional.gelu(x, approximate="tanh")
def _silu(x):
    return torch.nn.functional.silu(x)
def _sigmoid(x):
    return torch.sigmoid(x)
def _layernorm(x, axis=-1, eps=1e-5):
    m = x.mean(dim=axis, keepdim=True)
    v = x.var(dim=axis, keepdim=True, unbiased=False)
    return (x - m) / torch.sqrt(v + eps)
def _scatter_add(tgt, idx, src, axis=0):
    return tgt.clone().index_add_(axis, idx, src)
def _segment_sum(src, seg, n):
    out = torch.zeros((n,) + src.shape[1:], dtype=src.dtype)
    return out.index_add_(0, seg, src)
def _pad(x, pw):
    flat = tuple(v for pair in reversed(pw) for v in pair)
    return torch.nn.functional.pad(x, flat)

kernel_name = 'sequential_preLN__gqa_block_cached__geglu_ffn__decode'

def setup_inputs():

    _w = (lambda a: (lambda t: t.to(torch.bfloat16) if t.is_floating_point() else t)(torch.as_tensor(a)))
    def _A_setup():
        B, Sq, D = 1, 1, 448
        Hq, Hkv, Sk, Dh = 16, 8, 8192, 256
        assert Hq % Hkv == 0, (Hq, Hkv)
        return {
            "x": _w((lambda *s: torch.randn(*s, dtype=torch.bfloat16) * 0.05)(B, Sq, D)),
            "k_cache": _w((lambda *s: torch.randn(*s, dtype=torch.bfloat16) * 3.2)(B, Hkv, Sk, Dh)),
            "v_cache": _w((lambda *s: torch.randn(*s, dtype=torch.bfloat16) * 0.4)(B, Hkv, Sk, Dh)),
            "wq": _w((lambda *s: torch.randn(*s, dtype=torch.bfloat16) * 3.2)(D, Hq * Dh) * (D ** -0.5)),
            "wo": _w((lambda *s: torch.randn(*s, dtype=torch.bfloat16) * 0.4)(Hq * Dh, D) * ((Hq * Dh) ** -0.5)),
        }
    _A_in = _A_setup()

    def _B_setup():
        B, S, D, F = 1, 1, 448, 1792
        return {
            "x": _w((lambda *s: torch.randn(*s, dtype=torch.bfloat16) * 0.05)(B, S, D)),
            "w_gate": _w((lambda *s: torch.randn(*s, dtype=torch.bfloat16) * 0.05)(D, F)),
            "w_up": _w((lambda *s: torch.randn(*s, dtype=torch.bfloat16) * 0.05)(D, F)),
            "w_down": _w((lambda *s: torch.randn(*s, dtype=torch.bfloat16) * 0.05)(F, D)),
        }
    _B_in = _B_setup()

    return {
        "A_x": _A_in["x"],
        "A_k_cache": _A_in["k_cache"],
        "A_v_cache": _A_in["v_cache"],
        "A_wq": _A_in["wq"],
        "A_wo": _A_in["wo"],
        "B_x": _B_in["x"],
        "B_w_gate": _B_in["w_gate"],
        "B_w_up": _B_in["w_up"],
        "B_w_down": _B_in["w_down"],
    }

def reference(A_x, A_k_cache, A_v_cache, A_wq, A_wo, B_x, B_w_gate, B_w_up, B_w_down):
    def _A_ref(x, k_cache, v_cache, wq, wo):
        B, Sq, D = x.shape
        Hq, Dh = 16, 256
        Hkv = k_cache.shape[1]
        rep = Hq // Hkv
        q = (lambda x, *d: x.permute(*d))((x @ wq).reshape(B, Sq, Hq, Dh), 0, 2, 1, 3)
        k = (lambda x, n, axis: torch.repeat_interleave(x, n, dim=axis))(k_cache, rep, axis=1)
        v = (lambda x, n, axis: torch.repeat_interleave(x, n, dim=axis))(v_cache, rep, axis=1)
        scores = torch.einsum("bhqd,bhkd->bhqk", q, k) * (Dh ** -0.5)
        p = _softmax(scores, axis=-1)
        o = torch.einsum("bhqk,bhkd->bhqd", p, v)
        return (lambda x, *d: x.permute(*d))(o, 0, 2, 1, 3).reshape(B, Sq, Hq * Dh) @ wo

    def _B_ref(x, w_gate, w_up, w_down):
        return (_gelu(x @ w_gate) * (x @ w_up)) @ w_down

    x = A_x
    h = x + _A_ref(_layernorm(x, axis=-1), A_k_cache, A_v_cache, A_wq, A_wo)
    h2 = h + _B_ref(_layernorm(h, axis=-1), B_w_gate, B_w_up, B_w_down)
    return h2
```

```python
import sys

NAME = "sequential_preLN__gqa_block_cached__geglu_ffn__decode"
out = []
def E(s=""):
    out.append("    " + s if s and not s.endswith(":") else s)
def C(s):
    out.append("    ; " + s)

EPOCH_OFF = 0
QP_OFF = 0x1000
ML_OFF = 0x22000
HG_OFF = 0x24000
OP_OFF = 0x40000
AP_OFF = 0x140000
FP_OFF = 0x220000
XN32 = 0
QRED = 2048
QB = 6144
PB = 7168
MLW = 8192
ORED = 8448
REDA = 16640
REDB = 16896
REDD = 16960
HN = 17024
ACT = 18048
WT = 18176
LDS_BYTES = 32768
SPIN_LIMIT = 400000

S_WG = "s2"; S_WV = "s3"; S_G = "s4"; S_C = "s5"; S_TAG = "s6"; S_SPIN = "s7"
P_X = "s[16:17]"; P_K = "s[18:19]"; P_V = "s[20:21]"; P_WQ = "s[22:23]"; P_WO = "s[24:25]"
P_WG = "s[28:29]"; P_WU = "s[30:31]"; P_WD = "s[32:33]"; P_OUT = "s[34:35]"; P_WS = "s[38:39]"
M1 = "s[40:41]"; M2 = "s[42:43]"; M3 = "s[44:45]"
S_PLO = "s46"; S_PHI = "s47"
S_LOG2E = "s50"
M56 = "s[56:57]"; M224 = "s[54:55]"
VTAG = "v6"

def v(i): return f"v{i}"
def vr(a, n): return f"v[{a}:{a+n-1}]"

def allreduce(op, regs, tmps, upto32=True):
    for s in (1, 2, 4, 8):
        E("s_nop 1")
        for r in regs:
            E(f"{op}_dpp {v(r)}, {v(r)}, {v(r)} row_ror:{s} row_mask:0xf bank_mask:0xf")
    for r, t in zip(regs, tmps):
        E(f"v_mov_b32 {v(t)}, {v(r)}")
    E("s_nop 1")
    for r, t in zip(regs, tmps):
        E(f"v_permlane16_swap_b32 {v(r)}, {v(t)}")
    for r, t in zip(regs, tmps):
        E(f"{op} {v(r)}, {v(r)}, {v(t)}")
    if upto32:
        for r, t in zip(regs, tmps):
            E(f"v_mov_b32 {v(t)}, {v(r)}")
        E("s_nop 1")
        for r, t in zip(regs, tmps):
            E(f"v_permlane32_swap_b32 {v(r)}, {v(t)}")
        for r, t in zip(regs, tmps):
            E(f"{op} {v(r)}, {v(r)}, {v(t)}")

def bf16_round(r, t):
    E(f"v_cvt_pk_bf16_f32 {v(t)}, {v(r)}, {v(r)}")
    E(f"v_lshlrev_b32 {v(r)}, 16, {v(t)}")

def layernorm(pk, f, t):
    for i in range(4):
        E(f"v_lshlrev_b32 {v(f+2*i)}, 16, {v(pk[i])}")
        E(f"v_and_b32 {v(f+2*i+1)}, 0xffff0000, {v(pk[i])}")
    s = t; tmp = t + 1; mean = t + 2; mb = t + 3; sq = t + 4; d = t + 5; sd = t + 6; rc = t + 7
    E(f"v_add_f32 {v(s)}, {v(f)}, {v(f+1)}")
    for i in range(2, 8):
        E(f"v_add_f32 {v(s)}, {v(s)}, {v(f+i)}")
    allreduce("v_add_f32", [s], [tmp])
    E(f"v_mul_f32 {v(mean)}, 0x3b124925, {v(s)}")
    E(f"v_mov_b32 {v(sq)}, 0")
    E(f"s_mov_b64 exec, {M56}")
    for i in range(8):
        E(f"v_sub_f32 {v(d)}, {v(f+i)}, {v(mean)}")
        E(f"v_fmac_f32 {v(sq)}, {v(d)}, {v(d)}")
    E("s_mov_b64 exec, -1")
    allreduce("v_add_f32", [sq], [tmp])
    E(f"v_mul_f32 {v(sq)}, 0x3b124925, {v(sq)}")
    bf16_round(sq, tmp)
    E(f"v_add_f32 {v(sq)}, 0x3727c5ac, {v(sq)}")
    bf16_round(sq, tmp)
    E(f"v_sqrt_f32 {v(sd)}, {v(sq)}")
    E(f"v_mov_b32 {v(mb)}, {v(mean)}")
    bf16_round(mb, tmp)
    bf16_round(sd, tmp)
    E(f"v_rcp_f32 {v(rc)}, {v(sd)}")
    for i in range(8):
        E(f"v_sub_f32 {v(f+i)}, {v(f+i)}, {v(mb)}")
        bf16_round(f + i, tmp)
    for i in range(8):
        E(f"v_mul_f32 {v(d)}, {v(f+i)}, {v(rc)}")
        E(f"v_fma_f32 {v(tmp)}, -{v(d)}, {v(sd)}, {v(f+i)}")
        E(f"v_fma_f32 {v(f+i)}, {v(tmp)}, {v(rc)}, {v(d)}")
        bf16_round(f + i, tmp)

_lbl = [0]
def poll(loads, tagregs, acc, tmp, name):
    _lbl[0] += 1
    L = f"L_poll_{name}"
    E(f"{L}:")
    for l in loads:
        E(l)
    E("s_waitcnt vmcnt(0)")
    first = True
    for i in range(0, len(tagregs), 2):
        a = tagregs[i]
        if i + 1 < len(tagregs):
            b = tagregs[i + 1]
            if first:
                E(f"v_xor_b32 {v(acc)}, {VTAG}, {v(a)}")
                E(f"v_xor_b32 {v(tmp)}, {VTAG}, {v(b)}")
                E(f"v_or_b32 {v(acc)}, {v(acc)}, {v(tmp)}")
            else:
                E(f"v_xor_b32 {v(tmp)}, {VTAG}, {v(a)}")
                E(f"v_xor_b32 {v(tmp+1)}, {VTAG}, {v(b)}")
                E(f"v_or3_b32 {v(acc)}, {v(acc)}, {v(tmp)}, {v(tmp+1)}")
        else:
            if first:
                E(f"v_xor_b32 {v(acc)}, {VTAG}, {v(a)}")
            else:
                E(f"v_xor_b32 {v(tmp)}, {VTAG}, {v(a)}")
                E(f"v_or_b32 {v(acc)}, {v(acc)}, {v(tmp)}")
        first = False
    E(f"v_cmp_ne_u32 vcc, 0, {v(acc)}")
    E(f"s_cbranch_vccz {L}_ok")
    E(f"s_add_u32 {S_SPIN}, {S_SPIN}, 1")
    E(f"s_cmp_lt_u32 {S_SPIN}, {SPIN_LIMIT}")
    E(f"s_cbranch_scc1 {L}")
    E("s_endpgm")
    E(f"{L}_ok:")

C("=== prologue ===")
E(f"s_cmp_ge_u32 {S_WG}, 0x100")
E("s_cbranch_scc1 L_END")
E("s_load_dwordx16 s[16:31], s[0:1], 0")
E("s_load_dwordx8 s[32:39], s[0:1], 64")
E("v_and_b32 v1, 63, v0")
E("v_lshrrev_b32 v7, 6, v0")
E(f"s_lshr_b32 {S_G}, {S_WG}, 5")
E(f"s_and_b32 {S_C}, {S_WG}, 31")
E(f"v_readfirstlane_b32 {S_WV}, v7")
E(f"s_mov_b32 {S_SPIN}, 0")
E("s_mov_b32 s40, 0xffff0000"); E("s_mov_b32 s41, 0")
E("s_mov_b32 s42, 0"); E("s_mov_b32 s43, 0x0000ffff")
E("s_mov_b32 s44, 0"); E("s_mov_b32 s45, 0xffff0000")
E(f"s_mov_b32 {S_PLO}, 0x05040100"); E(f"s_mov_b32 {S_PHI}, 0x07060302")
E(f"s_mov_b32 {S_LOG2E}, 0x3fb8aa3b")
E("s_mov_b32 s56, -1"); E("s_mov_b32 s57, 0x00ffffff")
E("v_cmp_gt_u32 vcc, 0xe0, v0")
E(f"s_mov_b64 {M224}, vcc")
for i in range(2, 6):
    E(f"v_mov_b32 v{i}, 0")
E("v_lshlrev_b32 v16, 4, v1")
E("v_mov_b32 v17, 0")
E(f"s_lshr_b32 s8, {S_C}, 3")
E(f"s_and_b32 s9, {S_C}, 7")
E(f"s_mul_i32 s10, s8, {112*8192}")
E(f"s_lshl_b32 s11, {S_G}, 10")
E("s_lshl_b32 s12, s9, 7")
E("s_add_u32 s10, s10, s11")
E("s_add_u32 s10, s10, s12")
E("v_lshrrev_b32 v18, 5, v0")
E("v_and_b32 v19, 31, v0")
E(f"v_mul_u32_u24 v20, {7*8192}, v18")
E("v_lshl_add_u32 v20, v19, 2, v20")
E("v_add_u32 v20, s10, v20")
E(f"s_lshl_b32 s11, {S_G}, 22")
E(f"s_lshl_b32 s12, {S_C}, 17")
E("s_add_u32 s11, s11, s12")
E(f"s_and_b32 s12, {S_WV}, 3")
E("s_lshl_b32 s12, s12, 15")
E("s_add_u32 s11, s11, s12")
E("v_and_b32 v22, 15, v1")
E("v_lshrrev_b32 v23, 4, v1")
E("s_waitcnt lgkmcnt(0)")
E(f"global_load_dword v6, v17, {P_WS} sc1")
E(f"s_mov_b64 exec, {M56}")
E(f"global_load_dwordx4 v[2:5], v16, {P_X}")
E("s_mov_b64 exec, -1")
E("s_mov_b64 s[52:53], s[22:23]")
for i in range(7):
    E(f"global_load_dword v{8+i}, v20, s[52:53]")
    if i < 6:
        E("s_add_u32 s52, s52, 8192")
        E("s_addc_u32 s53, s53, 0")
E(f"s_cmp_ge_u32 {S_WV}, 4")
E("s_cbranch_scc1 L_VLOAD")
C("--- K loads: lane (r=l&15, gq=l>>4): key r, dims step*32+gq*8 ---")
E("v_lshlrev_b32 v21, 9, v22")
E("v_lshl_add_u32 v21, v23, 4, v21")
E("v_add_u32 v21, s11, v21")
for T in range(4):
    for st in range(8):
        E(f"global_load_dwordx4 {vr(64+(T*8+st)*4,4)}, v21, {P_K} offset:{st*64}")
    if T < 3:
        E("v_add_u32 v21, 0x2000, v21")
E("s_branch L_LOADED")
E("L_VLOAD:")
C("--- V loads: lane (n=l&15, gq): rows kb*32+gq*8+i, cols half*128+n*8 ---")
E("v_lshlrev_b32 v21, 12, v23")
E("v_lshl_add_u32 v21, v22, 4, v21")
E("v_add_u32 v21, s11, v21")
for kb in range(2):
    for half in range(2):
        for i in range(8):
            E(f"global_load_dwordx4 {vr(64+((kb*2+half)*8+i)*4,4)}, v21, {P_V} offset:{i*512+half*256}")
    if kb == 0:
        E("v_add_u32 v21, 0x4000, v21")
E("L_LOADED:")
C("=== LN(x) (every wave, redundantly) ===")
E("s_waitcnt vmcnt(39)")
E(f"v_readfirstlane_b32 s13, v6")
E("s_mul_i32 s13, s13, 1664525")
E(f"s_add_u32 {S_TAG}, s13, 1013904223")
E(f"v_mov_b32 {VTAG}, {S_TAG}")
layernorm([2, 3, 4, 5], 24, 32)
E("v_lshlrev_b32 v16, 5, v1")
E(f"s_mov_b64 exec, {M56}")
E(f"ds_write_b128 v16, v[24:27] offset:{XN32}")
E(f"ds_write_b128 v16, v[28:31] offset:{XN32+16}")
E("s_mov_b64 exec, -1")
E("s_mul_i32 s13, s8, 448")
E("v_mul_u32_u24 v16, 28, v18")
E("v_add_u32 v16, s13, v16")
E("s_waitcnt lgkmcnt(0)")
for i in range(7):
    E(f"ds_read_b32 v{24+i}, v16 offset:{XN32+4*i}")
E("v_mov_b32 v32, 0"); E("v_mov_b32 v33, 0")
E("s_waitcnt vmcnt(32) lgkmcnt(0)")
for i in range(7):
    E(f"v_lshlrev_b32 v34, 16, v{8+i}")
    E(f"v_and_b32 v35, 0xffff0000, v{8+i}")
    E(f"v_fmac_f32 v32, v{24+i}, v34")
    E(f"v_fmac_f32 v33, v{24+i}, v35")
E("v_lshlrev_b32 v16, 8, v18")
E("v_lshl_add_u32 v16, v19, 3, v16")
E(f"ds_write_b64 v16, v[32:33] offset:{QRED}")
E("s_waitcnt lgkmcnt(0)")
E("s_barrier")
E(f"s_cmp_lg_u32 {S_WV}, 0")
E("s_cbranch_scc1 L_QPUB_DONE")
C("wave 0: sum 16 row-groups, publish q partial granules")
E("v_lshlrev_b32 v16, 2, v1")
for r in range(16):
    E(f"ds_read_b32 v{24+r}, v16 offset:{QRED+r*256}")
E(f"s_lshl_b32 s13, {S_G}, 2"); E("s_add_u32 s13, s13, s8"); E("s_lshl_b32 s13, s13, 12")
E("s_lshl_b32 s14, s9, 9")
E("s_add_u32 s13, s13, s14")
E(f"s_add_u32 s13, s13, {QP_OFF}")
E("v_lshlrev_b32 v16, 3, v1")
E("v_add_u32 v16, s13, v16")
E("s_waitcnt lgkmcnt(0)")
E("v_add_f32 v40, v24, v25")
for r in range(2, 16):
    E(f"v_add_f32 v40, v40, v{24+r}")
E(f"v_mov_b32 v41, {VTAG}")
E(f"global_store_dwordx2 v16, v[40:41], {P_WS} sc1")
E("L_QPUB_DONE:")
E(f"s_cmp_ge_u32 {S_WV}, 4")
E("s_cbranch_scc1 L_VWAVE")

C("=== K-waves: gather q ===")
E(f"s_lshl_b32 s13, {S_G}, 14")
E(f"s_add_u32 s13, s13, {QP_OFF+4096}")
E("v_lshlrev_b32 v16, 4, v0")
E("v_add_u32 v16, s13, v16")
E("v_add_u32 v17, 0x2000, v16")
poll([f"global_load_dwordx4 v[24:27], v16, {P_WS} offset:-4096 sc1",
      f"global_load_dwordx4 v[28:31], v16, {P_WS} sc1",
      f"global_load_dwordx4 v[32:35], v17, {P_WS} offset:-4096 sc1",
      f"global_load_dwordx4 v[36:39], v17, {P_WS} sc1"],
     [25, 27, 29, 31, 33, 35, 37, 39], 40, 41, "q")
E("v_add_f32 v24, v24, v28"); E("v_add_f32 v26, v26, v30")
E("v_add_f32 v24, v24, v32"); E("v_add_f32 v26, v26, v34")
E("v_add_f32 v24, v24, v36"); E("v_add_f32 v26, v26, v38")
E("v_cvt_pk_bf16_f32 v24, v24, v26")
E("v_lshlrev_b32 v16, 2, v0")
E(f"ds_write_b32 v16, v24 offset:{QB}")
E("s_waitcnt lgkmcnt(0)")
E("s_barrier")
C("Q fragments: lane (m=l&15,gq): q[m&1][step*32+gq*8..]")
E("v_and_b32 v16, 1, v1")
E("v_lshlrev_b32 v16, 9, v16")
E("v_lshl_add_u32 v16, v23, 4, v16")
for st in range(8):
    E(f"ds_read_b128 {vr(192+st*4,4)}, v16 offset:{QB+st*64}")
E("s_waitcnt lgkmcnt(0)")
for T in range(4):
    for st in range(8):
        c = "0" if st == 0 else vr(224 + T * 4, 4)
        E(f"v_mfma_f32_16x16x32_bf16 {vr(224+T*4,4)}, {vr(192+st*4,4)}, {vr(64+(T*8+st)*4,4)}, {c}")
E("s_nop 7"); E("s_nop 1")
C("select tile by lane group: lane l <-> key l of this wave's 64 keys")
E(f"v_cndmask_b32 v24, v224, v228, {M1}"); E(f"v_cndmask_b32 v25, v225, v229, {M1}")
E(f"v_cndmask_b32 v24, v24, v232, {M2}");  E(f"v_cndmask_b32 v25, v25, v233, {M2}")
E(f"v_cndmask_b32 v24, v24, v236, {M3}");  E(f"v_cndmask_b32 v25, v25, v237, {M3}")
E("v_cvt_pk_bf16_f32 v26, v24, v25")
E("v_lshlrev_b32 v24, 16, v26")
E("v_and_b32 v25, 0xffff0000, v26")
E("v_mul_f32 v24, 0x3d800000, v24")
E("v_mul_f32 v25, 0x3d800000, v25")
E("v_mov_b32 v28, v24"); E("v_mov_b32 v29, v25")
allreduce("v_max_f32", [28, 29], [30, 31])
E("v_sub_f32 v24, v24, v28"); E("v_sub_f32 v25, v25, v29")
E(f"v_mul_f32 v24, {S_LOG2E}, v24"); E(f"v_mul_f32 v25, {S_LOG2E}, v25")
E("v_exp_f32 v24, v24"); E("v_exp_f32 v25, v25")
E("s_nop 0")
E("v_cvt_pk_bf16_f32 v26, v24, v25")
E(f"s_lshl_b32 s13, {S_WV}, 8")
E("v_lshlrev_b32 v16, 1, v1")
E("v_add_u32 v16, s13, v16")
E(f"ds_write_b16 v16, v26 offset:{PB}")
E(f"ds_write_b16_d16_hi v16, v26 offset:{PB+128}")
allreduce("v_add_f32", [24, 25], [30, 31])
E("v_mov_b32 v32, v28"); E("v_mov_b32 v33, v24"); E("v_mov_b32 v34, v29"); E("v_mov_b32 v35, v25")
E(f"s_lshl_b32 s13, {S_WV}, 4")
E("v_mov_b32 v16, s13")
E("s_mov_b64 exec, 1")
E(f"ds_write_b128 v16, v[32:35] offset:{MLW}")
E("s_mov_b64 exec, -1")
E("s_waitcnt lgkmcnt(0)")
E("s_barrier")

C("=== K-waves: issue tail weight loads ===")
E(f"s_mul_i32 s13, {S_WG}, {16*896}")
E("v_lshlrev_b32 v16, 2, v0")
E("v_add_u32 v16, s13, v16")
E(f"s_mov_b64 exec, {M224}")
for i in range(16):
    E(f"global_load_dword v{64+i}, v16, {P_WO} offset:{(i%4)*896}")
    if i % 4 == 3 and i < 15:
        E(f"v_add_u32 v16, {4*896}, v16")
E("s_mov_b64 exec, -1")
E(f"s_cmp_ge_u32 {S_WG}, 224")
E("s_cbranch_scc1 L_NOFFNW")
E(f"s_mul_i32 s13, {S_WG}, {8*896}")
E("v_lshlrev_b32 v16, 2, v0")
E("v_add_u32 v16, s13, v16")
E(f"s_mov_b64 exec, {M224}")
for i in range(8):
    E(f"global_load_dword v{112+i}, v16, {P_WD} offset:{(i%4)*896}")
    if i == 3:
        E(f"v_add_u32 v16, {4*896}, v16")
E("s_mov_b64 exec, -1")
E(f"s_lshl_b32 s13, {S_WG}, 2")
E("v_mov_b32 v16, s13")
E(f"global_load_dword v248, v16, {P_X}")
E(f"s_cmp_lg_u32 {S_WV}, 0")
E("s_cbranch_scc1 L_NOGU")
C("wave 0: gate/up slices -> LDS (interleaved) -> MFMA A fragments via transposing reads")
E(f"v_mul_u32_u24 v16, 3584, v1")
E(f"s_lshl_b32 s13, {S_WG}, 4")
E("v_add_u32 v16, s13, v16")
for it in range(7):
    E(f"global_load_dwordx4 {vr(136+it*8,4)}, v16, {P_WG}")
    E(f"global_load_dwordx4 {vr(140+it*8,4)}, v16, {P_WU}")
    if it < 6:
        E(f"v_add_u32 v16, {64*3584}, v16")
E("v_lshlrev_b32 v17, 5, v1")
E(f"v_add_u32 v17, {WT}, v17")
for it in range(7):
    E(f"s_waitcnt vmcnt({2*(6-it)})")
    for j in range(4):
        E(f"ds_write2_b32 v17, v{136+it*8+j}, v{140+it*8+j} offset0:{2*j} offset1:{2*j+1}")
    if it < 6:
        E("v_add_u32 v17, 2048, v17")
E("v_lshrrev_b32 v16, 2, v22")
E("v_lshl_add_u32 v16, v23, 3, v16")
E("v_lshlrev_b32 v16, 5, v16")
E("v_and_b32 v17, 3, v1")
E("v_lshl_add_u32 v16, v17, 3, v16")
E("s_waitcnt lgkmcnt(0)")
for s in range(14):
    E(f"ds_read_b64_tr_b16 {vr(192+s*4,2)}, v16 offset:{WT+s*1024}")
    E(f"ds_read_b64_tr_b16 {vr(194+s*4,2)}, v16 offset:{WT+s*1024+128}")
    if s % 4 == 3:
        E("s_waitcnt lgkmcnt(0)")
E("s_waitcnt lgkmcnt(0)")
E("L_NOGU:")
E("s_waitcnt vmcnt(0)")
for i in range(8):
    E(f"v_lshlrev_b32 v{120+2*i}, 16, v{112+i}")
    E(f"v_and_b32 v{121+2*i}, 0xffff0000, v{112+i}")
E("L_NOFFNW:")
E("s_waitcnt vmcnt(0)")
for i in range(16):
    E(f"v_lshlrev_b32 v{80+2*i}, 16, v{64+i}")
    E(f"v_and_b32 v{81+2*i}, 0xffff0000, v{64+i}")
E("s_barrier")

C("=== combine the 4 V-wave partials, publish ===")
E("v_lshrrev_b32 v16, 7, v0")
E("v_lshlrev_b32 v17, 3, v16")
for w in range(4):
    E(f"ds_read_b64 {vr(24+2*w,2)}, v17 offset:{MLW+16*w}")
E("v_and_b32 v18, 127, v0")
E("v_lshlrev_b32 v18, 3, v18")
E("v_lshl_add_u32 v18, v16, 10, v18")
for w in range(4):
    E(f"ds_read_b64 {vr(32+2*w,2)}, v18 offset:{ORED+2048*w}")
E("s_waitcnt lgkmcnt(0)")
E("v_max_f32 v40, v24, v26"); E("v_max3_f32 v40, v40, v28, v30")
for w in range(4):
    E(f"v_sub_f32 v{44+w}, v{24+2*w}, v40")
    E(f"v_mul_f32 v{44+w}, {S_LOG2E}, v{44+w}")
    E(f"v_exp_f32 v{44+w}, v{44+w}")
E("s_nop 0")
E("v_mul_f32 v42, v44, v25")
E("v_mul_f32 v48, v44, v32"); E("v_mul_f32 v50, v44, v33")
for w in range(1, 4):
    E(f"v_fmac_f32 v42, v{44+w}, v{25+2*w}")
    E(f"v_fmac_f32 v48, v{44+w}, v{32+2*w}")
    E(f"v_fmac_f32 v50, v{44+w}, v{33+2*w}")
E(f"v_mov_b32 v49, {VTAG}"); E(f"v_mov_b32 v51, {VTAG}")
E(f"v_mov_b32 v41, {VTAG}"); E(f"v_mov_b32 v43, {VTAG}")
E(f"s_lshl_b32 s13, {S_WG}, 12")
E(f"s_add_u32 s13, s13, {OP_OFF}")
E("v_lshlrev_b32 v17, 4, v0")
E("v_add_u32 v17, s13, v17")
E(f"global_store_dwordx4 v17, v[48:51], {P_WS} sc1")
E(f"s_lshl_b32 s13, {S_G}, 10")
E(f"s_lshl_b32 s14, {S_C}, 4")
E("s_add_u32 s13, s13, s14")
E(f"s_add_u32 s13, s13, {ML_OFF}")
E("v_lshlrev_b32 v17, 9, v16")
E("v_add_u32 v17, s13, v17")
E("v_and_b32 v18, 127, v0")
E("v_cmp_eq_u32 vcc, 0, v18")
E("s_and_saveexec_b64 s[48:49], vcc")
E("s_cbranch_execz L_NOML")
E(f"global_store_dwordx4 v17, v[40:43], {P_WS} sc1")
E("L_NOML:")
E("s_mov_b64 exec, -1")

C("=== hop A: gather 32 chunk partials for (head hh = w>>4, dims (w&15)*16..+16) ===")
E(f"s_lshr_b32 s8, {S_WG}, 4"); E("s_and_b32 s8, s8, 1")
E(f"s_and_b32 s9, {S_WG}, 15")
E(f"s_lshl_b32 s13, {S_G}, 17")
E("s_lshl_b32 s14, s8, 11")
E("s_add_u32 s13, s13, s14")
E("s_lshl_b32 s14, s9, 7")
E("s_add_u32 s13, s13, s14")
E(f"s_add_u32 s13, s13, {OP_OFF}")
E("v_lshrrev_b32 v18, 3, v0")
E("v_and_b32 v19, 7, v0")
E("v_lshlrev_b32 v16, 12, v18")
E("v_lshl_add_u32 v16, v19, 4, v16")
E("v_add_u32 v16, s13, v16")
E(f"s_lshl_b32 s13, {S_G}, 10")
E("s_lshl_b32 s14, s8, 9")
E("s_add_u32 s13, s13, s14")
E(f"s_add_u32 s13, s13, {ML_OFF}")
E("v_and_b32 v17, 31, v1")
E("v_lshlrev_b32 v17, 4, v17")
E("v_add_u32 v17, s13, v17")
poll([f"global_load_dwordx4 v[24:27], v16, {P_WS} sc1",
      f"global_load_dwordx4 v[28:31], v17, {P_WS} sc1"],
     [25, 27, 29, 31], 40, 41, "a")
E("v_mov_b32 v32, v28")
allreduce("v_max_f32", [32], [33])
E("v_sub_f32 v34, v28, v32")
E(f"v_mul_f32 v34, {S_LOG2E}, v34")
E("v_exp_f32 v34, v34")
E("v_lshlrev_b32 v36, 2, v18")
E("v_mul_f32 v35, v34, v30")
E("ds_bpermute_b32 v37, v36, v34")
allreduce("v_add_f32", [35], [33], upto32=False)
E("s_waitcnt lgkmcnt(0)")
E("v_mul_f32 v24, v37, v24"); E("v_mul_f32 v26, v37, v26")
E("s_nop 1")
E("v_add_f32_dpp v24, v24, v24 row_ror:8 row_mask:0xf bank_mask:0xf")
E("v_add_f32_dpp v26, v26, v26 row_ror:8 row_mask:0xf bank_mask:0xf")
E("v_mov_b32 v38, v24"); E("v_mov_b32 v39, v26")
E("s_nop 1")
E("v_permlane16_swap_b32 v24, v38"); E("v_permlane16_swap_b32 v26, v39")
E("v_add_f32 v24, v24, v38"); E("v_add_f32 v26, v26, v39")
E("v_mov_b32 v38, v24"); E("v_mov_b32 v39, v26")
E("s_nop 1")
E("v_permlane32_swap_b32 v24, v38"); E("v_permlane32_swap_b32 v26, v39")
E("v_add_f32 v24, v24, v38"); E("v_add_f32 v25, v26, v39")
E(f"s_lshl_b32 s13, {S_WV}, 6")
E("v_lshlrev_b32 v16, 3, v1")
E("v_add_u32 v16, s13, v16")
E("s_mov_b64 exec, 0xff")
E(f"ds_write_b64 v16, v[24:25] offset:{REDA}")
E("s_mov_b64 exec, -1")
E("v_rcp_f32 v35, v35")
E("s_waitcnt lgkmcnt(0)")
E("s_barrier")
E("v_lshlrev_b32 v16, 2, v22")
for w in range(4):
    E(f"ds_read_b32 v{24+w}, v16 offset:{REDA+64*w}")
E("s_waitcnt lgkmcnt(0)")
E("v_add_f32 v24, v24, v25"); E("v_add_f32 v24, v24, v26"); E("v_add_f32 v24, v24, v27")
E("v_mul_f32 v24, v24, v35")
bf16_round(24, 25)
E("s_nop 0")
for i in range(16):
    E(f"v_readlane_b32 s{60+i}, v24, {i}")
E("s_nop 1")
E("v_mul_f32 v24, s60, v80"); E("v_mul_f32 v26, s60, v81")
for i in range(1, 16):
    E(f"v_fmac_f32 v24, s{60+i}, v{80+2*i}")
    E(f"v_fmac_f32 v26, s{60+i}, v{81+2*i}")
E(f"v_mov_b32 v25, {VTAG}"); E(f"v_mov_b32 v27, {VTAG}")
E(f"s_mul_i32 s13, {S_WG}, 3584")
E(f"s_add_u32 s13, s13, {AP_OFF}")
E("v_lshlrev_b32 v16, 4, v0")
E("v_add_u32 v16, s13, v16")
E(f"s_mov_b64 exec, {M224}")
E(f"global_store_dwordx4 v16, v[24:27], {P_WS} sc1")
E("s_mov_b64 exec, -1")
E(f"s_cmp_ge_u32 {S_WG}, 224")
E("s_cbranch_scc1 L_END")

def reduce_cols(off, nthreads, red, bar_name, tagname):
    E(f"s_lshl_b32 s13, {S_WG}, 4")
    E(f"s_add_u32 s13, s13, {off}")
    E("v_mul_u32_u24 v16, 3584, v0")
    E("v_add_u32 v16, s13, v16")
    E("v_mov_b32 v24, 0"); E("v_mov_b32 v26, 0")
    if nthreads < 256:
        E(f"s_mov_b64 exec, {M224}")
    poll([f"global_load_dwordx4 v[24:27], v16, {P_WS} sc1"], [25, 27], 40, 41, tagname)
    if nthreads < 256:
        E("s_mov_b64 exec, -1")
    allreduce("v_add_f32", [24, 26], [28, 29])
    E("v_mov_b32 v25, v26")
    E(f"s_lshl_b32 s13, {S_WV}, 3")
    E("v_mov_b32 v16, s13")
    E("s_mov_b64 exec, 1")
    E(f"ds_write_b64 v16, v[24:25] offset:{red}")
    E("s_mov_b64 exec, -1")
    E("v_mov_b32 v16, 0")
    E("s_waitcnt lgkmcnt(0)")
    E("s_barrier")
    E(f"ds_read_b128 v[28:31], v16 offset:{red}")
    E(f"ds_read_b128 v[32:35], v16 offset:{red+16}")
    E("s_waitcnt lgkmcnt(0)")
    E("v_add_f32 v24, v28, v30"); E("v_add_f32 v25, v29, v31")
    E("v_add_f32 v24, v24, v32"); E("v_add_f32 v25, v25, v33")
    E("v_add_f32 v24, v24, v34"); E("v_add_f32 v25, v25, v35")

C("=== hop B: attn columns (2w,2w+1) -> h ===")
reduce_cols(AP_OFF, 256, REDB, "B6", "b")
E("v_cvt_pk_bf16_f32 v26, v24, v25")
E("v_lshlrev_b32 v24, 16, v26"); E("v_and_b32 v25, 0xffff0000, v26")
E("v_lshlrev_b32 v28, 16, v248"); E("v_and_b32 v29, 0xffff0000, v248")
E("v_add_f32 v24, v24, v28"); E("v_add_f32 v25, v25, v29")
E("v_cvt_pk_bf16_f32 v250, v24, v25")
E(f"v_mov_b32 v251, {VTAG}")
E(f"s_cmp_lg_u32 {S_WV}, 0")
E("s_cbranch_scc1 L_WAITACT")
E(f"s_lshl_b32 s13, {S_WG}, 3")
E(f"s_add_u32 s13, s13, {HG_OFF}")
E("v_mov_b32 v16, s13")
E("s_mov_b64 exec, 1")
E(f"global_store_dwordx2 v16, v[250:251], {P_WS} sc1")
E("s_mov_b64 exec, -1")
C("=== hop C (wave 0): gather h, LN, gate/up MFMA, act ===")
E("v_lshlrev_b32 v16, 5, v1")
E(f"v_add_u32 v16, {HG_OFF}, v16")
for i in range(24, 32):
    E(f"v_mov_b32 v{i}, 0")
E(f"s_mov_b64 exec, {M56}")
poll([f"global_load_dwordx4 v[24:27], v16, {P_WS} sc1",
      f"global_load_dwordx4 v[28:31], v16, {P_WS} offset:16 sc1"],
     [25, 27, 29, 31], 40, 41, "c")
E("s_mov_b64 exec, -1")
layernorm([24, 26, 28, 30], 32, 40)
for i in range(4):
    E(f"v_cvt_pk_bf16_f32 v{24+i}, v{32+2*i}, v{33+2*i}")
E("v_lshlrev_b32 v16, 4, v1")
E(f"s_mov_b64 exec, {M56}")
E(f"ds_write_b128 v16, v[24:27] offset:{HN}")
E("s_mov_b64 exec, -1")
E("v_lshlrev_b32 v17, 4, v23")
E("s_waitcnt lgkmcnt(0)")
for s in range(14):
    E(f"ds_read_b128 {vr(136+4*s,4)}, v17 offset:{HN+64*s}")
for s in range(14):
    E(f"s_waitcnt lgkmcnt({13-s})")
    c = "0" if s == 0 else "v[24:27]"
    E(f"v_mfma_f32_16x16x32_bf16 v[24:27], {vr(192+4*s,4)}, {vr(136+4*s,4)}, {c}")
E("s_nop 7"); E("s_nop 1")
E("v_cvt_pk_bf16_f32 v28, v24, v25")
E("v_cvt_pk_bf16_f32 v29, v26, v27")
E("v_lshlrev_b32 v24, 16, v28"); E("v_and_b32 v25, 0xffff0000, v28")
E("v_lshlrev_b32 v26, 16, v29"); E("v_and_b32 v27, 0xffff0000, v29")
E("s_mov_b32 s13, 0x3d372713")
E("s_mov_b32 s14, 0x40135761")
for g, u, tA, tB in ((24, 26, 30, 31), (25, 27, 32, 33)):
    E(f"v_mul_f32 v{tA}, v{g}, v{g}")
    E(f"v_mul_f32 v{tA}, v{tA}, v{g}")
    E(f"v_fma_f32 v{tA}, s13, v{tA}, v{g}")
    E(f"v_mul_f32 v{tA}, s14, v{tA}")
    E(f"v_exp_f32 v{tA}, v{tA}")
    E("s_nop 0")
    E(f"v_add_f32 v{tA}, 1.0, v{tA}")
    E(f"v_rcp_f32 v{tA}, v{tA}")
    E("s_nop 0")
    E(f"v_sub_f32 v{tA}, 1.0, v{tA}")
    E(f"v_mul_f32 v{tA}, v{g}, v{tA}")
    bf16_round(tA, tB)
    E(f"v_mul_f32 v{tA}, v{tA}, v{u}")
    bf16_round(tA, tB)
E("v_mov_b32 v31, v32")
E("v_lshlrev_b32 v16, 3, v23")
E("s_mov_b32 s48, 0x00010001"); E("s_mov_b32 s49, 0x00010001")
E("s_mov_b64 exec, s[48:49]")
E(f"ds_write_b64 v16, v[30:31] offset:{ACT}")
E("s_mov_b64 exec, -1")
E("s_waitcnt lgkmcnt(0)")
E("L_WAITACT:")
E("s_barrier")
E("v_mov_b32 v16, 0")
E(f"ds_read_b128 v[32:35], v16 offset:{ACT}")
E(f"ds_read_b128 v[36:39], v16 offset:{ACT+16}")
E("s_waitcnt lgkmcnt(0)")
E("v_mul_f32 v24, v32, v120"); E("v_mul_f32 v26, v32, v121")
for i in range(1, 8):
    E(f"v_fmac_f32 v24, v{32+i}, v{120+2*i}")
    E(f"v_fmac_f32 v26, v{32+i}, v{121+2*i}")
E(f"v_mov_b32 v25, {VTAG}"); E(f"v_mov_b32 v27, {VTAG}")
E(f"s_mul_i32 s13, {S_WG}, 3584")
E(f"s_add_u32 s13, s13, {FP_OFF}")
E("v_lshlrev_b32 v16, 4, v0")
E("v_add_u32 v16, s13, v16")
E(f"s_mov_b64 exec, {M224}")
E(f"global_store_dwordx4 v16, v[24:27], {P_WS} sc1")
E("s_mov_b64 exec, -1")
C("=== hop D: ffn columns -> out ===")
reduce_cols(FP_OFF, 224, REDD, "B8", "d")
E(f"s_cmp_lg_u32 {S_WV}, 0")
E("s_cbranch_scc1 L_END")
E("v_cvt_pk_bf16_f32 v26, v24, v25")
E("v_lshlrev_b32 v24, 16, v26"); E("v_and_b32 v25, 0xffff0000, v26")
E("v_lshlrev_b32 v28, 16, v250"); E("v_and_b32 v29, 0xffff0000, v250")
E("v_add_f32 v24, v24, v28"); E("v_add_f32 v25, v25, v29")
E("v_cvt_pk_bf16_f32 v26, v24, v25")
E(f"s_lshl_b32 s13, {S_WG}, 2")
E("v_mov_b32 v16, s13")
E("s_mov_b64 exec, 1")
E(f"global_store_dword v16, v26, {P_OUT}")
E(f"s_cmp_lg_u32 {S_WG}, 0")
E("s_cbranch_scc1 L_END")
E("v_mov_b32 v16, 0")
E(f"global_store_dword v16, {VTAG}, {P_WS} sc1")
E("s_branch L_END")

E("L_VWAVE:")
C("=== V-waves ===")
E("s_barrier")
E("s_barrier")
E(f"s_and_b32 s13, {S_WV}, 3")
E("s_lshl_b32 s13, s13, 8")
E("v_and_b32 v16, 1, v1")
E("v_lshlrev_b32 v16, 7, v16")
E("v_lshl_add_u32 v16, v23, 4, v16")
E("v_add_u32 v16, s13, v16")
E(f"ds_read_b128 v[8:11], v16 offset:{PB}")
E(f"ds_read_b128 v[12:15], v16 offset:{PB+64}")
E("s_waitcnt lgkmcnt(0)")
for kb in range(2):
    for half in range(2):
        tile = kb * 2 + half
        base = 64 + tile * 32
        E(f"s_waitcnt vmcnt({8*(3-tile)})")
        for j in range(8):
            c = j // 2
            sel = S_PLO if j % 2 == 0 else S_PHI
            for p in range(4):
                E(f"v_perm_b32 v{24+j*4+p}, v{base+(2*p+1)*4+c}, v{base+(2*p)*4+c}, {sel}")
        E("s_nop 1")
        for j in range(8):
            acc = 192 + (half * 8 + j) * 4
            cc = "0" if kb == 0 else vr(acc, 4)
            E(f"v_mfma_f32_16x16x32_bf16 {vr(acc,4)}, {vr(8+kb*4,4)}, {vr(24+j*4,4)}, {cc}")
        if tile < 3:
            E("s_nop 7")
E("s_nop 7"); E("s_nop 1")
E(f"s_and_b32 s13, {S_WV}, 3")
E("s_lshl_b32 s13, s13, 11")
E("v_lshlrev_b32 v16, 5, v1")
E("v_add_u32 v16, s13, v16")
E("s_mov_b64 exec, 0xffff")
for half in range(2):
    for j in range(8):
        acc = 192 + (half * 8 + j) * 4
        E(f"ds_write_b32 v16, v{acc} offset:{ORED+half*512+j*4}")
        E(f"ds_write_b32 v16, v{acc+1} offset:{ORED+1024+half*512+j*4}")
E("s_mov_b64 exec, -1")
E("s_waitcnt lgkmcnt(0)")
E("s_barrier")
E("L_END:")

header = open("cdna_kernels/" + NAME + ".s.ref").read().split("\n")
hdr = []
for l in header:
    if l.startswith("; @launch"):
        hdr.append(f"; @launch grid=(256,1,1) block=(512,1,1) lds={LDS_BYTES}")
    elif l.startswith(";"):
        hdr.append(l)
    else:
        break
txt = "\n".join(hdr) + f"""
.amdgcn_target "amdgcn-amd-amdhsa--gfx950"
.text
.globl {NAME}_kernel
.p2align 8
.type {NAME}_kernel,@function
{NAME}_kernel:
""" + "\n".join(out) + f"""
s_endpgm
.section .rodata,"a"
.p2align 6
.amdhsa_kernel {NAME}_kernel
  .amdhsa_next_free_vgpr 256
  .amdhsa_next_free_sgpr 102
  .amdhsa_accum_offset 256
  .amdhsa_group_segment_fixed_size 0
  .amdhsa_kernarg_size 96
  .amdhsa_user_sgpr_count 2
  .amdhsa_user_sgpr_kernarg_segment_ptr 1
  .amdhsa_system_sgpr_workgroup_id_x 1
.end_amdhsa_kernel
"""
dst = sys.argv[1] if len(sys.argv) > 1 else "cdna_kernels/" + NAME + ".s"
open(dst, "w").write(txt)
print("wrote", dst, len(txt))
```

```python
import sys, os

NAME = "sequential_preLN__gqa_block_cached__geglu_ffn__decode"
out = []
def E(s=""):
    out.append("    " + s if s and not s.endswith(":") else s)
def C(s):
    out.append("    ; " + s)

QP_OFF = 0x1000
ML_OFF = 0x22000
HG_OFF = 0x24000
NREP = 16
OP_OFF = 0x40000
AP_OFF = 0x140000
FP_OFF = 0x220000
XN32 = 0
QRED = 2048
QB = 6144
PB = 7168
MLW = 8192
ORED = 8448
REDA = 16640
REDB = 16896
REDD = 16960
QCNT = 17008
HN = 17024
ACT = 18048
GL = 18176
UL = GL + 7168
WOL = UL + 7168
WDL = WOL + 14336
QBW = WDL + 7168
LDS_BYTES = 58368
SPIN_LIMIT = 400000

S_WG = "s2"; S_WV = "s3"; S_G = "s4"; S_C = "s5"; S_TAG = "s6"; S_SPIN = "s7"; S_WC = "s15"
P_X = "s[16:17]"; P_K = "s[18:19]"; P_V = "s[20:21]"; P_WQ = "s[22:23]"; P_WO = "s[24:25]"
P_WG = "s[28:29]"; P_WU = "s[30:31]"; P_WD = "s[32:33]"; P_OUT = "s[34:35]"; P_WS = "s[38:39]"
M1 = "s[40:41]"; M2 = "s[42:43]"; M3 = "s[44:45]"
S_PLO = "s46"; S_PHI = "s47"
S_LOG2E = "s50"
M56 = "s[56:57]"; M224 = "s[54:55]"
VTAG = "v6"
STAMP = int(os.environ.get("STAMP", "0"))

def v(i): return f"v{i}"
def vr(a, n): return f"v[{a}:{a+n-1}]"

def stamp(i):
    if not STAMP: return
    E("s_memrealtime s[58:59]")
    E("s_waitcnt lgkmcnt(0)")
    E(f"s_mov_b32 s{76+i}, s58")

def allreduce(op, regs, tmps, upto32=True):
    for s in (1, 2, 4, 8):
        E("s_nop 1")
        for r in regs:
            E(f"{op}_dpp {v(r)}, {v(r)}, {v(r)} row_ror:{s} row_mask:0xf bank_mask:0xf")
    for r, t in zip(regs, tmps):
        E(f"v_mov_b32 {v(t)}, {v(r)}")
    E("s_nop 1")
    for r, t in zip(regs, tmps):
        E(f"v_permlane16_swap_b32 {v(r)}, {v(t)}")
    for r, t in zip(regs, tmps):
        E(f"{op} {v(r)}, {v(r)}, {v(t)}")
    if upto32:
        for r, t in zip(regs, tmps):
            E(f"v_mov_b32 {v(t)}, {v(r)}")
        E("s_nop 1")
        for r, t in zip(regs, tmps):
            E(f"v_permlane32_swap_b32 {v(r)}, {v(t)}")
        for r, t in zip(regs, tmps):
            E(f"{op} {v(r)}, {v(r)}, {v(t)}")

def bf16_round(r, t):
    E(f"v_cvt_pk_bf16_f32 {v(t)}, {v(r)}, {v(r)}")
    E(f"v_lshlrev_b32 {v(r)}, 16, {v(t)}")

def layernorm(pk, f, t):
    for i in range(4):
        E(f"v_lshlrev_b32 {v(f+2*i)}, 16, {v(pk[i])}")
        E(f"v_and_b32 {v(f+2*i+1)}, 0xffff0000, {v(pk[i])}")
    s = t; tmp = t + 1; mean = t + 2; mb = t + 3; sq = t + 4; d = t + 5; sd = t + 6; rc = t + 7
    E(f"v_add_f32 {v(s)}, {v(f)}, {v(f+1)}")
    for i in range(2, 8):
        E(f"v_add_f32 {v(s)}, {v(s)}, {v(f+i)}")
    allreduce("v_add_f32", [s], [tmp])
    E(f"v_mul_f32 {v(mean)}, 0x3b124925, {v(s)}")
    E(f"v_mov_b32 {v(sq)}, 0")
    E(f"s_mov_b64 exec, {M56}")
    for i in range(8):
        E(f"v_sub_f32 {v(d)}, {v(f+i)}, {v(mean)}")
        E(f"v_fmac_f32 {v(sq)}, {v(d)}, {v(d)}")
    E("s_mov_b64 exec, -1")
    allreduce("v_add_f32", [sq], [tmp])
    E(f"v_mul_f32 {v(sq)}, 0x3b124925, {v(sq)}")
    bf16_round(sq, tmp)
    E(f"v_add_f32 {v(sq)}, 0x3727c5ac, {v(sq)}")
    bf16_round(sq, tmp)
    E(f"v_sqrt_f32 {v(sd)}, {v(sq)}")
    E(f"v_mov_b32 {v(mb)}, {v(mean)}")
    bf16_round(mb, tmp)
    bf16_round(sd, tmp)
    E(f"v_rcp_f32 {v(rc)}, {v(sd)}")
    for i in range(8):
        E(f"v_sub_f32 {v(f+i)}, {v(f+i)}, {v(mb)}")
        bf16_round(f + i, tmp)
    for i in range(8):
        E(f"v_mul_f32 {v(d)}, {v(f+i)}, {v(rc)}")
        E(f"v_fma_f32 {v(tmp)}, -{v(d)}, {v(sd)}, {v(f+i)}")
        E(f"v_fma_f32 {v(f+i)}, {v(tmp)}, {v(rc)}, {v(d)}")
        bf16_round(f + i, tmp)

def check_tags(tagregs, acc, tmp):
    first = True
    for i in range(0, len(tagregs), 2):
        a = tagregs[i]; b = tagregs[i + 1]
        if first:
            E(f"v_xor_b32 {v(acc)}, {VTAG}, {v(a)}")
            E(f"v_xor_b32 {v(tmp)}, {VTAG}, {v(b)}")
            E(f"v_or_b32 {v(acc)}, {v(acc)}, {v(tmp)}")
        else:
            E(f"v_xor_b32 {v(tmp)}, {VTAG}, {v(a)}")
            E(f"v_xor_b32 {v(tmp+1)}, {VTAG}, {v(b)}")
            E(f"v_or3_b32 {v(acc)}, {v(acc)}, {v(tmp)}, {v(tmp+1)}")
        first = False
    E(f"v_cmp_ne_u32 vcc, 0, {v(acc)}")

def poll1(loads, tagregs, acc, tmp, name):
    L = f"L_poll_{name}"
    E(f"{L}:")
    for l in loads: E(l)
    E("s_waitcnt vmcnt(0)")
    check_tags(tagregs, acc, tmp)
    E(f"s_cbranch_vccz {L}_ok")
    E(f"s_add_u32 {S_SPIN}, {S_SPIN}, 1")
    E(f"s_cmp_lt_u32 {S_SPIN}, {SPIN_LIMIT}")
    E(f"s_cbranch_scc1 {L}")
    E("s_endpgm")
    E(f"{L}_ok:")

PA, PBB = 64, 72
def poll2(name, mk, nl, canon, acc, tmp, pre=None):
    L = f"L_poll_{name}"
    n = 4 * nl
    tags = lambda b: [b + 4 * i + j for i in range(nl) for j in (1, 3)]
    for l in mk(PA): E(l)
    if pre: pre()
    E(f"{L}:")
    for l in mk(PBB): E(l)
    E(f"s_waitcnt vmcnt({nl})")
    check_tags(tags(PA), acc, tmp)
    E(f"s_cbranch_vccz {L}_okA")
    for l in mk(PA): E(l)
    E(f"s_waitcnt vmcnt({nl})")
    check_tags(tags(PBB), acc, tmp)
    E(f"s_cbranch_vccz {L}_okB")
    E(f"s_add_u32 {S_SPIN}, {S_SPIN}, 1")
    E(f"s_cmp_lt_u32 {S_SPIN}, {SPIN_LIMIT}")
    E(f"s_cbranch_scc1 {L}")
    E("s_endpgm")
    E(f"{L}_okB:")
    for i in range(n): E(f"v_mov_b32 {v(canon+i)}, {v(PBB+i)}")
    E(f"s_branch {L}_done")
    E(f"{L}_okA:")
    for i in range(n): E(f"v_mov_b32 {v(canon+i)}, {v(PA+i)}")
    E(f"{L}_done:")

def poll3(name, mk, nl, canon, acc, tmp, pre=None):
    L = f"L_poll_{name}"
    n = 4 * nl
    tags = lambda b: [b + 4 * i + j for i in range(nl) for j in (1, 3)]
    MISS = "s[92:93]"; MA = "s[94:95]"; MB = "s[96:97]"; SAVE = "s[98:99]"; OK = "s[100:101]"
    E(f"s_mov_b64 {SAVE}, exec")
    E(f"s_mov_b64 {MISS}, exec")
    E(f"s_mov_b64 {MA}, exec")
    for l in mk(PA): E(l)
    if pre:
        E("s_mov_b64 exec, -1")
        pre()
    def half(issue_base, issue_mask, chk_base, chk_mask):
        E(f"s_mov_b64 exec, {MISS}")
        E(f"s_mov_b64 {issue_mask}, {MISS}")
        for l in mk(issue_base): E(l)
        E(f"s_waitcnt vmcnt({nl})")
        E(f"s_mov_b64 exec, {chk_mask}")
        check_tags(tags(chk_base), acc, tmp)
        E(f"s_andn2_b64 {OK}, {chk_mask}, vcc")
        E(f"s_mov_b64 exec, {OK}")
        for i in range(n): E(f"v_mov_b32 {v(canon+i)}, {v(chk_base+i)}")
        E(f"s_andn2_b64 {MISS}, {MISS}, {OK}")
        E(f"s_cbranch_scc0 {L}_done")
    E(f"{L}:")
    half(PBB, MB, PA, MA)
    half(PA, MA, PBB, MB)
    E(f"s_add_u32 {S_SPIN}, {S_SPIN}, 1")
    E(f"s_cmp_lt_u32 {S_SPIN}, {SPIN_LIMIT}")
    E(f"s_cbranch_scc1 {L}")
    E("s_endpgm")
    E(f"{L}_done:")
    E(f"s_mov_b64 exec, {SAVE}")

def qphase(w1, w2):
    E(f"s_waitcnt vmcnt({w1})")
    stamp(1)
    E("v_readfirstlane_b32 s13, v6")
    E("s_mul_i32 s13, s13, 1664525")
    E(f"s_add_u32 {S_TAG}, s13, 1013904223")
    E(f"v_mov_b32 {VTAG}, {S_TAG}")
    layernorm([2, 3, 4, 5], 24, 32)
    E("v_lshlrev_b32 v16, 5, v1")
    E(f"s_mov_b64 exec, {M56}")
    E(f"ds_write_b128 v16, v[24:27] offset:{XN32}")
    E(f"ds_write_b128 v16, v[28:31] offset:{XN32+16}")
    E("s_mov_b64 exec, -1")
    E("s_mul_i32 s13, s8, 448")
    E("v_mul_u32_u24 v16, 28, v18")
    E("v_add_u32 v16, s13, v16")
    E("s_waitcnt lgkmcnt(0)")
    for i in range(7):
        E(f"ds_read_b32 v{24+i}, v16 offset:{XN32+4*i}")
    E("v_mov_b32 v32, 0"); E("v_mov_b32 v33, 0")
    E(f"s_waitcnt vmcnt({w2}) lgkmcnt(0)")
    for i in range(7):
        E(f"v_lshlrev_b32 v34, 16, v{8+i}")
        E(f"v_and_b32 v35, 0xffff0000, v{8+i}")
        E(f"v_fmac_f32 v32, v{24+i}, v34")
        E(f"v_fmac_f32 v33, v{24+i}, v35")
    E("v_lshlrev_b32 v16, 8, v18")
    E("v_lshl_add_u32 v16, v19, 3, v16")
    E(f"ds_write_b64 v16, v[32:33] offset:{QRED}")
    E("v_mov_b32 v16, 0")
    E(f"ds_write_b32 v16, v16 offset:{QCNT}")
    E("s_waitcnt lgkmcnt(0)")
    E("s_barrier")

POLL = poll3 if int(os.environ.get("P3", "1")) else poll2
C("=== prologue ===")
stamp(0)
E(f"s_cmp_ge_u32 {S_WG}, 0x100")
E("s_cbranch_scc1 L_END2")
E("s_load_dwordx16 s[16:31], s[0:1], 0")
E("s_load_dwordx8 s[32:39], s[0:1], 64")
E("v_and_b32 v1, 63, v0")
E("v_lshrrev_b32 v7, 6, v0")
E(f"s_lshr_b32 {S_G}, {S_WG}, 5")
E(f"s_and_b32 {S_C}, {S_WG}, 31")
E(f"v_readfirstlane_b32 {S_WV}, v7")
E(f"s_mov_b32 {S_SPIN}, 0")
E(f"s_min_u32 {S_WC}, {S_WG}, 223")
if int(os.environ.get("XMAP", "1")):
    E(f"s_and_b32 s13, {S_WG}, 7")
    E("s_mul_i32 s13, s13, 28")
    E(f"s_lshr_b32 s14, {S_WG}, 3")
    E("s_add_u32 s13, s13, s14")
    E("s_min_u32 s51, s13, 223")
else:
    E(f"s_mov_b32 s51, {S_WC}")
E("s_mov_b32 s40, 0xffff0000"); E("s_mov_b32 s41, 0")
E("s_mov_b32 s42, 0"); E("s_mov_b32 s43, 0x0000ffff")
E("s_mov_b32 s44, 0"); E("s_mov_b32 s45, 0xffff0000")
E(f"s_mov_b32 {S_PLO}, 0x05040100"); E(f"s_mov_b32 {S_PHI}, 0x07060302")
E(f"s_mov_b32 {S_LOG2E}, 0x3fb8aa3b")
E("s_mov_b32 s56, -1"); E("s_mov_b32 s57, 0x00ffffff")
E("v_cmp_gt_u32 vcc, 0xe0, v0")
E(f"s_mov_b64 {M224}, vcc")
for i in range(2, 6):
    E(f"v_mov_b32 v{i}, 0")
E("v_lshlrev_b32 v16, 4, v1")
E("v_mov_b32 v17, 0")
E(f"s_lshl_b32 s13, {S_WC}, 2")
E("v_mov_b32 v15, s13")
E(f"s_lshr_b32 s8, {S_C}, 3")
E(f"s_and_b32 s9, {S_C}, 7")
E(f"s_mul_i32 s10, s8, {112*8192}")
E(f"s_lshl_b32 s11, {S_G}, 10")
E("s_lshl_b32 s12, s9, 7")
E("s_add_u32 s10, s10, s11")
E("s_add_u32 s10, s10, s12")
E("v_lshrrev_b32 v18, 5, v0")
E("v_and_b32 v19, 31, v0")
E(f"v_mul_u32_u24 v20, {7*8192}, v18")
E("v_lshl_add_u32 v20, v19, 2, v20")
E("v_add_u32 v20, s10, v20")
E(f"s_lshl_b32 s11, {S_G}, 22")
E(f"s_lshl_b32 s12, {S_C}, 17")
E("s_add_u32 s11, s11, s12")
E(f"s_and_b32 s12, {S_WV}, 3")
E("s_lshl_b32 s12, s12, 15")
E("s_add_u32 s11, s11, s12")
E("v_and_b32 v22, 15, v1")
E("v_lshrrev_b32 v23, 4, v1")
E("s_waitcnt lgkmcnt(0)")
E(f"global_load_dword v6, v17, {P_WS} sc1")
E(f"s_mov_b64 exec, {M56}")
E(f"global_load_dwordx4 v[2:5], v16, {P_X}")
E("s_mov_b64 exec, -1")
E(f"global_load_dword v7, v15, {P_X}")
E("s_mov_b64 s[52:53], s[22:23]")
for i in range(7):
    E(f"global_load_dword v{8+i}, v20, s[52:53]")
    if i < 6:
        E("s_add_u32 s52, s52, 8192")
        E("s_addc_u32 s53, s53, 0")
E("s_barrier")
E(f"s_cmp_ge_u32 {S_WV}, 4")
E("s_cbranch_scc1 L_VPATH")
C("--- K loads ---")
E("v_lshlrev_b32 v21, 9, v22")
E("v_lshl_add_u32 v21, v23, 4, v21")
E("v_add_u32 v21, s11, v21")
NPRE = int(os.environ.get("NPRE", "8"))
def kloads(lo, hi):
    for idx in range(lo, hi):
        T, st = divmod(idx, 8)
        E(f"global_load_dwordx4 {vr(64+idx*4,4)}, v21, {P_K} offset:{st*64}")
        if st == 7 and T < 3:
            E("v_add_u32 v21, 0x2000, v21")
kloads(0, NPRE)
qphase(7 + NPRE, NPRE)
stamp(2)
E(f"s_cmp_lg_u32 {S_WV}, 0")
E("s_cbranch_scc1 L_QPUB_DONE")
C("wave 0: sum 16 row-groups, publish q partial granules")
E("v_lshlrev_b32 v16, 2, v1")
for r in range(16):
    E(f"ds_read_b32 v{24+r}, v16 offset:{QRED+r*256}")
E(f"s_lshl_b32 s13, {S_G}, 2"); E("s_add_u32 s13, s13, s8"); E("s_lshl_b32 s13, s13, 12")
E("s_lshl_b32 s14, s9, 9")
E("s_add_u32 s13, s13, s14")
E(f"s_add_u32 s13, s13, {QP_OFF}")
E("v_lshlrev_b32 v16, 3, v1")
E("v_add_u32 v16, s13, v16")
E("s_waitcnt lgkmcnt(0)")
E("v_add_f32 v40, v24, v25")
for r in range(2, 16):
    E(f"v_add_f32 v40, v40, v{24+r}")
E(f"v_mov_b32 v41, {VTAG}")
E(f"global_store_dwordx2 v16, v[40:41], {P_WS} sc1")
E("L_QPUB_DONE:")
kloads(NPRE, 32)
C("=== K-waves: gather q (quarter per wave), sync K-waves through an LDS counter ===")
E(f"s_lshl_b32 s13, {S_G}, 14")
E(f"s_add_u32 s13, s13, {QP_OFF+4096}")
E("v_lshlrev_b32 v16, 4, v0")
E("v_add_u32 v16, s13, v16")
E("v_add_u32 v17, 0x2000, v16")
poll1([f"global_load_dwordx4 v[24:27], v16, {P_WS} offset:-4096 sc1",
       f"global_load_dwordx4 v[28:31], v16, {P_WS} sc1",
       f"global_load_dwordx4 v[32:35], v17, {P_WS} offset:-4096 sc1",
       f"global_load_dwordx4 v[36:39], v17, {P_WS} sc1"],
      [25, 27, 29, 31, 33, 35, 37, 39], 40, 41, "q")
stamp(3)
E("v_add_f32 v24, v24, v28"); E("v_add_f32 v26, v26, v30")
E("v_add_f32 v24, v24, v32"); E("v_add_f32 v26, v26, v34")
E("v_add_f32 v24, v24, v36"); E("v_add_f32 v26, v26, v38")
E("v_cvt_pk_bf16_f32 v24, v24, v26")
E("v_lshlrev_b32 v16, 2, v0")
E(f"ds_write_b32 v16, v24 offset:{QB}")
E("v_mov_b32 v17, 0"); E("v_mov_b32 v25, 1")
E("s_waitcnt lgkmcnt(0)")
E("s_mov_b64 exec, 1")
E(f"ds_add_u32 v17, v25 offset:{QCNT}")
E("s_mov_b64 exec, -1")
E("L_qsync:")
E(f"ds_read_b32 v26, v17 offset:{QCNT}")
E("s_waitcnt lgkmcnt(0)")
E("v_cmp_gt_u32 vcc, 4, v26")
E("s_cbranch_vccz L_qsync_ok")
E(f"s_add_u32 {S_SPIN}, {S_SPIN}, 1")
E(f"s_cmp_lt_u32 {S_SPIN}, {SPIN_LIMIT*8}")
E("s_cbranch_scc1 L_qsync")
E("s_endpgm")
E("L_qsync_ok:")
E("v_and_b32 v16, 1, v1")
E("v_lshlrev_b32 v16, 9, v16")
E("v_lshl_add_u32 v16, v23, 4, v16")
for st in range(8):
    E(f"ds_read_b128 {vr(192+st*4,4)}, v16 offset:{QB+st*64}")
E("s_waitcnt lgkmcnt(0)")
for T in range(4):
    for st in range(8):
        c = "0" if st == 0 else vr(224 + T * 4, 4)
        E(f"v_mfma_f32_16x16x32_bf16 {vr(224+T*4,4)}, {vr(192+st*4,4)}, {vr(64+(T*8+st)*4,4)}, {c}")
E("s_nop 7"); E("s_nop 1")
E(f"v_cndmask_b32 v24, v224, v228, {M1}"); E(f"v_cndmask_b32 v25, v225, v229, {M1}")
E(f"v_cndmask_b32 v24, v24, v232, {M2}");  E(f"v_cndmask_b32 v25, v25, v233, {M2}")
E(f"v_cndmask_b32 v24, v24, v236, {M3}");  E(f"v_cndmask_b32 v25, v25, v237, {M3}")
E("v_cvt_pk_bf16_f32 v26, v24, v25")
E("v_lshlrev_b32 v24, 16, v26")
E("v_and_b32 v25, 0xffff0000, v26")
E("v_mul_f32 v24, 0x3d800000, v24")
E("v_mul_f32 v25, 0x3d800000, v25")
E("v_mov_b32 v28, v24"); E("v_mov_b32 v29, v25")
allreduce("v_max_f32", [28, 29], [30, 31])
E("v_sub_f32 v24, v24, v28"); E("v_sub_f32 v25, v25, v29")
E(f"v_mul_f32 v24, {S_LOG2E}, v24"); E(f"v_mul_f32 v25, {S_LOG2E}, v25")
E("v_exp_f32 v24, v24"); E("v_exp_f32 v25, v25")
E("s_nop 0")
E("v_cvt_pk_bf16_f32 v26, v24, v25")
E(f"s_lshl_b32 s13, {S_WV}, 8")
E("v_lshlrev_b32 v16, 1, v1")
E("v_add_u32 v16, s13, v16")
E(f"ds_write_b16 v16, v26 offset:{PB}")
E(f"ds_write_b16_d16_hi v16, v26 offset:{PB+128}")
allreduce("v_add_f32", [24, 25], [30, 31])
E("v_mov_b32 v32, v28"); E("v_mov_b32 v33, v24"); E("v_mov_b32 v34, v29"); E("v_mov_b32 v35, v25")
E(f"s_lshl_b32 s13, {S_WV}, 4")
E("v_mov_b32 v16, s13")
E("s_mov_b64 exec, 1")
E(f"ds_write_b128 v16, v[32:35] offset:{MLW}")
E("s_mov_b64 exec, -1")
E("s_waitcnt lgkmcnt(0)")
E("s_barrier")
stamp(4)
C("precompute hop-A addresses while waiting")
E(f"s_lshr_b32 s8, {S_WG}, 4"); E("s_and_b32 s8, s8, 1")
E(f"s_and_b32 s9, {S_WG}, 15")
E(f"s_lshl_b32 s13, {S_G}, 17")
E("s_lshl_b32 s14, s8, 11")
E("s_add_u32 s13, s13, s14")
E("s_lshl_b32 s14, s9, 7")
E("s_add_u32 s13, s13, s14")
E(f"s_add_u32 s13, s13, {OP_OFF}")
E("v_lshrrev_b32 v52, 3, v0")
E("v_and_b32 v53, 7, v0")
E("v_lshlrev_b32 v54, 12, v52")
E("v_lshl_add_u32 v54, v53, 4, v54")
E("v_add_u32 v54, s13, v54")
E(f"s_lshl_b32 s13, {S_G}, 10")
E("s_lshl_b32 s14, s8, 9")
E("s_add_u32 s13, s13, s14")
E(f"s_add_u32 s13, s13, {ML_OFF}")
E("v_and_b32 v55, 31, v1")
E("v_lshlrev_b32 v55, 4, v55")
E("v_add_u32 v55, s13, v55")
E("v_lshrrev_b32 v16, 7, v0")
E("v_lshlrev_b32 v17, 3, v16")
E("v_and_b32 v18, 127, v0")
E("v_lshlrev_b32 v18, 3, v18")
E("v_lshl_add_u32 v18, v16, 10, v18")
E(f"s_lshl_b32 s13, {S_WG}, 12")
E(f"s_add_u32 s13, s13, {OP_OFF}")
E("v_lshlrev_b32 v56, 4, v0")
E("v_add_u32 v56, s13, v56")
E(f"s_lshl_b32 s13, {S_G}, 10")
E(f"s_lshl_b32 s14, {S_C}, 4")
E("s_add_u32 s13, s13, s14")
E(f"s_add_u32 s13, s13, {ML_OFF}")
E("v_lshlrev_b32 v57, 9, v16")
E("v_add_u32 v57, s13, v57")
E("v_and_b32 v58, 127, v0")
E("v_cmp_eq_u32 vcc, 0, v58")
E("s_mov_b64 s[60:61], vcc")
E("s_barrier")
stamp(5)
C("=== combine the 4 V-wave partials, publish ===")
for w in range(4):
    E(f"ds_read_b64 {vr(24+2*w,2)}, v17 offset:{MLW+16*w}")
for w in range(4):
    E(f"ds_read_b64 {vr(32+2*w,2)}, v18 offset:{ORED+2048*w}")
E("s_waitcnt lgkmcnt(0)")
E("v_max_f32 v40, v24, v26"); E("v_max3_f32 v40, v40, v28, v30")
for w in range(4):
    E(f"v_sub_f32 v{44+w}, v{24+2*w}, v40")
    E(f"v_mul_f32 v{44+w}, {S_LOG2E}, v{44+w}")
    E(f"v_exp_f32 v{44+w}, v{44+w}")
E("s_nop 0")
E("v_mul_f32 v42, v44, v25")
E("v_mul_f32 v48, v44, v32"); E("v_mul_f32 v50, v44, v33")
for w in range(1, 4):
    E(f"v_fmac_f32 v42, v{44+w}, v{25+2*w}")
    E(f"v_fmac_f32 v48, v{44+w}, v{32+2*w}")
    E(f"v_fmac_f32 v50, v{44+w}, v{33+2*w}")
E(f"v_mov_b32 v49, {VTAG}"); E(f"v_mov_b32 v51, {VTAG}")
E(f"v_mov_b32 v41, {VTAG}"); E(f"v_mov_b32 v43, {VTAG}")
E(f"global_store_dwordx4 v56, v[48:51], {P_WS} sc1")
E("s_mov_b64 exec, s[60:61]")
E("s_cbranch_execz L_NOML")
E(f"global_store_dwordx4 v57, v[40:43], {P_WS} sc1")
E("L_NOML:")
E("s_mov_b64 exec, -1")

def pre_a():
    C("meanwhile: pull wo weights out of LDS")
    E("s_barrier")
    E("v_lshlrev_b32 v16, 2, v0")
    for i in range(16):
        E(f"ds_read_b32 v{136+i}, v16 offset:{WOL+896*i}")
        if i == 11: E("s_waitcnt lgkmcnt(4)")
    E("s_waitcnt lgkmcnt(0)")
    for i in range(16):
        E(f"v_lshlrev_b32 v{80+2*i}, 16, v{136+i}")
        E(f"v_and_b32 v{81+2*i}, 0xffff0000, v{136+i}")

def pre_b():
    C("meanwhile: pull down weights and gate/up fragments out of LDS")
    E("v_lshlrev_b32 v17, 2, v0")
    for i in range(8):
        E(f"ds_read_b32 v{152+i}, v17 offset:{WDL+896*i}")
    E("s_waitcnt lgkmcnt(0)")
    for i in range(8):
        E(f"v_lshlrev_b32 v{120+2*i}, 16, v{152+i}")
        E(f"v_and_b32 v{121+2*i}, 0xffff0000, v{152+i}")
    E(f"s_cmp_lg_u32 {S_WV}, 0")
    E("s_cbranch_scc1 L_NOGU")
    E("v_lshrrev_b32 v18, 2, v22")
    E("v_lshl_add_u32 v18, v23, 3, v18")
    E("v_lshlrev_b32 v18, 4, v18")
    E("v_and_b32 v17, 1, v1")
    E("v_lshl_add_u32 v18, v17, 3, v18")
    E("v_and_b32 v17, 2, v1")
    E(f"v_mul_u32_u24 v17, {7168//2}, v17")
    E("v_add_u32 v18, v18, v17")
    for s in range(14):
        E(f"ds_read_b64_tr_b16 {vr(192+s*4,2)}, v18 offset:{GL+s*512}")
        E(f"ds_read_b64_tr_b16 {vr(194+s*4,2)}, v18 offset:{GL+s*512+64}")
        if s % 4 == 3:
            E("s_waitcnt lgkmcnt(0)")
    E("s_waitcnt lgkmcnt(0)")
    E("L_NOGU:")

C("=== hop A ===")
POLL("a", lambda b: [f"global_load_dwordx4 {vr(b,4)}, v54, {P_WS} sc1",
                      f"global_load_dwordx4 {vr(b+4,4)}, v55, {P_WS} sc1"], 2, 24, 40, 41, pre_a)
stamp(6)
E("v_mov_b32 v32, v28")
allreduce("v_max_f32", [32], [33])
E("v_sub_f32 v34, v28, v32")
E(f"v_mul_f32 v34, {S_LOG2E}, v34")
E("v_exp_f32 v34, v34")
E("v_lshlrev_b32 v36, 2, v52")
E("v_mul_f32 v35, v34, v30")
E("ds_bpermute_b32 v37, v36, v34")
allreduce("v_add_f32", [35], [33], upto32=False)
E("s_waitcnt lgkmcnt(0)")
E("v_mul_f32 v24, v37, v24"); E("v_mul_f32 v26, v37, v26")
E("s_nop 1")
E("v_add_f32_dpp v24, v24, v24 row_ror:8 row_mask:0xf bank_mask:0xf")
E("v_add_f32_dpp v26, v26, v26 row_ror:8 row_mask:0xf bank_mask:0xf")
E("v_mov_b32 v38, v24"); E("v_mov_b32 v39, v26")
E("s_nop 1")
E("v_permlane16_swap_b32 v24, v38"); E("v_permlane16_swap_b32 v26, v39")
E("v_add_f32 v24, v24, v38"); E("v_add_f32 v26, v26, v39")
E("v_mov_b32 v38, v24"); E("v_mov_b32 v39, v26")
E("s_nop 1")
E("v_permlane32_swap_b32 v24, v38"); E("v_permlane32_swap_b32 v26, v39")
E("v_add_f32 v24, v24, v38"); E("v_add_f32 v25, v26, v39")
E(f"s_lshl_b32 s13, {S_WV}, 6")
E("v_lshlrev_b32 v16, 3, v1")
E("v_add_u32 v16, s13, v16")
E("s_mov_b64 exec, 0xff")
E(f"ds_write_b64 v16, v[24:25] offset:{REDA}")
E("s_mov_b64 exec, -1")
E("v_rcp_f32 v35, v35")
E("s_waitcnt lgkmcnt(0)")
E("s_barrier")
E("v_lshlrev_b32 v16, 2, v22")
for w in range(4):
    E(f"ds_read_b32 v{24+w}, v16 offset:{REDA+64*w}")
E(f"s_mul_i32 s13, {S_WG}, 3584")
E(f"s_add_u32 s13, s13, {AP_OFF}")
E("v_lshlrev_b32 v16, 4, v0")
E("v_add_u32 v16, s13, v16")
E("s_waitcnt lgkmcnt(0)")
E("v_add_f32 v24, v24, v25"); E("v_add_f32 v24, v24, v26"); E("v_add_f32 v24, v24, v27")
E("v_mul_f32 v24, v24, v35")
bf16_round(24, 25)
E("s_nop 0")
for i in range(16):
    E(f"v_readlane_b32 s{60+i}, v24, {i}")
E("s_nop 1")
E("v_mul_f32 v24, s60, v80"); E("v_mul_f32 v26, s60, v81")
for i in range(1, 16):
    E(f"v_fmac_f32 v24, s{60+i}, v{80+2*i}")
    E(f"v_fmac_f32 v26, s{60+i}, v{81+2*i}")
E(f"v_mov_b32 v25, {VTAG}"); E(f"v_mov_b32 v27, {VTAG}")
E(f"s_mov_b64 exec, {M224}")
E(f"global_store_dwordx4 v16, v[24:27], {P_WS} sc1")
E("s_mov_b64 exec, -1")
stamp(7)
E("s_barrier")
E(f"s_cmp_ge_u32 {S_WG}, 224")
E("s_cbranch_scc1 L_END")

def reduce_cols(off, nthreads, red, tagname):
    E(f"s_lshl_b32 s13, {S_WG}, 4")
    E(f"s_add_u32 s13, s13, {off}")
    E("v_mul_u32_u24 v16, 3584, v0")
    E("v_add_u32 v16, s13, v16")
    E("v_mov_b32 v24, 0"); E("v_mov_b32 v26, 0")
    if nthreads < 256:
        E(f"s_mov_b64 exec, {M224}")
    POLL(tagname, lambda b: [f"global_load_dwordx4 {vr(b,4)}, v16, {P_WS} sc1"], 1, 24, 40, 41, pre_b if tagname == "b" else None)
    stamp(8 if tagname == "b" else 11)
    if nthreads < 256:
        E("s_mov_b64 exec, -1")
    allreduce("v_add_f32", [24, 26], [28, 29])
    E("v_mov_b32 v25, v26")
    E(f"s_lshl_b32 s13, {S_WV}, 3")
    E("v_mov_b32 v16, s13")
    E("s_mov_b64 exec, 1")
    E(f"ds_write_b64 v16, v[24:25] offset:{red}")
    E("s_mov_b64 exec, -1")
    E("v_mov_b32 v16, 0")
    E("s_waitcnt lgkmcnt(0)")
    E("s_barrier")
    E(f"ds_read_b128 v[28:31], v16 offset:{red}")
    E(f"ds_read_b128 v[32:35], v16 offset:{red+16}")
    E("s_waitcnt lgkmcnt(0)")
    E("v_add_f32 v24, v28, v30"); E("v_add_f32 v25, v29, v31")
    E("v_add_f32 v24, v24, v32"); E("v_add_f32 v25, v25, v33")
    E("v_add_f32 v24, v24, v34"); E("v_add_f32 v25, v25, v35")

C("=== hop B: attn columns (2w,2w+1) -> h ===")
reduce_cols(AP_OFF, 256, REDB, "b")
E("v_cvt_pk_bf16_f32 v26, v24, v25")
E("v_lshlrev_b32 v24, 16, v26"); E("v_and_b32 v25, 0xffff0000, v26")
E("v_lshlrev_b32 v28, 16, v7"); E("v_and_b32 v29, 0xffff0000, v7")
E("v_add_f32 v24, v24, v28"); E("v_add_f32 v25, v25, v29")
E("v_cvt_pk_bf16_f32 v250, v24, v25")
E(f"v_mov_b32 v251, {VTAG}")
E(f"s_cmp_lg_u32 {S_WV}, 0")
E("s_cbranch_scc1 L_WAITACT")
E(f"s_lshl_b32 s13, {S_WG}, 3")
E(f"s_add_u32 s13, s13, {HG_OFF}")
E("v_lshlrev_b32 v16, 11, v1")
E("v_add_u32 v16, s13, v16")
E(f"s_mov_b64 exec, {(1<<NREP)-1}")
E(f"global_store_dwordx2 v16, v[250:251], {P_WS} sc1")
E("s_mov_b64 exec, -1")
C("=== hop C (wave 0): gather h, LN, gate/up MFMA, act ===")
E(f"s_and_b32 s13, {S_WG}, {NREP-1}")
E("s_lshl_b32 s13, s13, 11")
E(f"s_add_u32 s13, s13, {HG_OFF}")
E("v_lshlrev_b32 v16, 5, v1")
E("v_add_u32 v16, s13, v16")
for i in range(24, 32):
    E(f"v_mov_b32 v{i}, 0")
E(f"s_mov_b64 exec, {M56}")
POLL("c", lambda b: [f"global_load_dwordx4 {vr(b,4)}, v16, {P_WS} sc1",
                      f"global_load_dwordx4 {vr(b+4,4)}, v16, {P_WS} offset:16 sc1"], 2, 24, 40, 41)
stamp(9)
E("s_mov_b64 exec, -1")
layernorm([24, 26, 28, 30], 32, 40)
for i in range(4):
    E(f"v_cvt_pk_bf16_f32 v{24+i}, v{32+2*i}, v{33+2*i}")
E("v_lshlrev_b32 v16, 4, v1")
E(f"s_mov_b64 exec, {M56}")
E(f"ds_write_b128 v16, v[24:27] offset:{HN}")
E("s_mov_b64 exec, -1")
E("v_lshlrev_b32 v17, 4, v23")
E("s_waitcnt lgkmcnt(0)")
for s in range(14):
    E(f"ds_read_b128 {vr(136+4*s,4)}, v17 offset:{HN+64*s}")
for s in range(14):
    E(f"s_waitcnt lgkmcnt({13-s})")
    c = "0" if s == 0 else "v[24:27]"
    E(f"v_mfma_f32_16x16x32_bf16 v[24:27], {vr(192+4*s,4)}, {vr(136+4*s,4)}, {c}")
E("s_nop 7"); E("s_nop 1")
C("rows: g'=0,1 -> gate cols 4g'+r ; g'=2,3 -> up. bring up to low half")
for r in range(4):
    E(f"v_mov_b32 v{28+r}, v{24+r}")
E("s_nop 1")
for r in range(4):
    E(f"v_permlane32_swap_b32 v{24+r}, v{28+r}")
E("s_mov_b32 s13, 0x3d372713")
E("s_mov_b32 s14, 0x40135761")
for r in range(4):
    bf16_round(24 + r, 40)
    bf16_round(28 + r, 40)
for r in range(4):
    g = 24 + r; u = 28 + r; tA = 32 + r
    E(f"v_mul_f32 v{tA}, v{g}, v{g}")
    E(f"v_mul_f32 v{tA}, v{tA}, v{g}")
    E(f"v_fma_f32 v{tA}, s13, v{tA}, v{g}")
    E(f"v_mul_f32 v{tA}, s14, v{tA}")
for r in range(4):
    E(f"v_exp_f32 v{32+r}, v{32+r}")
for r in range(4):
    E(f"v_add_f32 v{32+r}, 1.0, v{32+r}")
for r in range(4):
    E(f"v_rcp_f32 v{32+r}, v{32+r}")
for r in range(4):
    E(f"v_sub_f32 v{32+r}, 1.0, v{32+r}")
for r in range(4):
    E(f"v_mul_f32 v{32+r}, v{24+r}, v{32+r}")
    bf16_round(32 + r, 40)
    E(f"v_mul_f32 v{32+r}, v{32+r}, v{28+r}")
    bf16_round(32 + r, 40)
E("v_mov_b32 v16, v1")
E("s_mov_b32 s48, 0x00010001"); E("s_mov_b32 s49, 0")
E("s_mov_b64 exec, s[48:49]")
E(f"ds_write_b128 v16, v[32:35] offset:{ACT}")
E("s_mov_b64 exec, -1")
E("s_waitcnt lgkmcnt(0)")
E("L_WAITACT:")
E("s_barrier")
E("v_mov_b32 v16, 0")
E(f"ds_read_b128 v[32:35], v16 offset:{ACT}")
E(f"ds_read_b128 v[36:39], v16 offset:{ACT+16}")
E(f"s_mul_i32 s13, {S_WG}, 3584")
E(f"s_add_u32 s13, s13, {FP_OFF}")
E("v_lshlrev_b32 v16, 4, v0")
E("v_add_u32 v16, s13, v16")
E("s_waitcnt lgkmcnt(0)")
E("v_mul_f32 v24, v32, v120"); E("v_mul_f32 v26, v32, v121")
for i in range(1, 8):
    E(f"v_fmac_f32 v24, v{32+i}, v{120+2*i}")
    E(f"v_fmac_f32 v26, v{32+i}, v{121+2*i}")
E(f"v_mov_b32 v25, {VTAG}"); E(f"v_mov_b32 v27, {VTAG}")
E(f"s_mov_b64 exec, {M224}")
E(f"global_store_dwordx4 v16, v[24:27], {P_WS} sc1")
E("s_mov_b64 exec, -1")
stamp(10)
C("=== hop D: ffn columns -> out ===")
reduce_cols(FP_OFF, 224, REDD, "d")
E(f"s_cmp_lg_u32 {S_WV}, 0")
E("s_cbranch_scc1 L_END")
E("v_cvt_pk_bf16_f32 v26, v24, v25")
E("v_lshlrev_b32 v24, 16, v26"); E("v_and_b32 v25, 0xffff0000, v26")
E("v_lshlrev_b32 v28, 16, v250"); E("v_and_b32 v29, 0xffff0000, v250")
E("v_add_f32 v24, v24, v28"); E("v_add_f32 v25, v25, v29")
E("v_cvt_pk_bf16_f32 v26, v24, v25")
E(f"s_lshl_b32 s13, {S_WG}, 2")
E("v_mov_b32 v16, s13")
E("s_mov_b64 exec, 1")
E(f"global_store_dword v16, v26, {P_OUT}")
E(f"s_cmp_lg_u32 {S_WG}, 0")
E("s_cbranch_scc1 L_END")
E("v_mov_b32 v16, 0")
E(f"global_store_dword v16, {VTAG}, {P_WS} sc1")
E("s_branch L_END")

E("L_VPATH:")
C("--- V loads ---")
E("v_lshlrev_b32 v21, 12, v23")
E("v_lshl_add_u32 v21, v22, 4, v21")
E("v_add_u32 v21, s11, v21")
def vloads(lo, hi):
    for idx in range(lo, hi):
        tile, i = divmod(idx, 8)
        kb, half = divmod(tile, 2)
        E(f"global_load_dwordx4 {vr(64+idx*4,4)}, v21, {P_V} offset:{i*512+half*256}")
        if idx == 15:
            E("v_add_u32 v21, 0x4000, v21")
vloads(0, NPRE)
qphase(7 + NPRE, NPRE)
vloads(NPRE, 32)
C("--- LDS-DMA of tail weights: 9 per V-wave ---")
E(f"s_mul_i32 s13, {S_WG}, 14336")
E("v_lshlrev_b32 v56, 4, v1")
E("v_add_u32 v57, s13, v56")
E(f"s_mul_i32 s13, s51, 7168")
E("v_add_u32 v58, s13, v56")
E(f"s_lshl_b32 s13, s51, 4")
E("v_mul_u32_u24 v59, 3584, v1")
E("v_add_u32 v59, s13, v59")
wo_l = [("wo", i) for i in range(14)]
ff_l = [("dn", i) for i in range(7)] + [("g", i) for i in range(7)] + [("u", i) for i in range(7)] + [("u", 6)]
desc = wo_l[0:4] + ff_l[0:5] + wo_l[4:8] + ff_l[5:10] + wo_l[8:11] + ff_l[10:16] + wo_l[11:14] + ff_l[16:22]
assert len(desc) == 36
for vw in range(4):
    if vw < 3:
        E(f"s_cmp_lg_u32 {S_WV}, {4+vw}")
        E(f"s_cbranch_scc1 L_DMA{vw+1}")
    for k, (ty, i) in enumerate(desc[vw*9:(vw+1)*9]):
        t = 60 + (k % 4)
        if ty == "wo":
            E(f"s_mov_b32 m0, {WOL+1024*i}"); E(f"v_add_u32 v{t}, {1024*i}, v57"); p = P_WO
        elif ty == "dn":
            E(f"s_mov_b32 m0, {WDL+1024*i}"); E(f"v_add_u32 v{t}, {1024*i}, v58"); p = P_WD
        elif ty == "g":
            E(f"s_mov_b32 m0, {GL+1024*i}"); E(f"v_add_u32 v{t}, {64*3584*i}, v59"); p = P_WG
        else:
            E(f"s_mov_b32 m0, {UL+1024*i}"); E(f"v_add_u32 v{t}, {64*3584*i}, v59"); p = P_WU
        E(f"global_load_lds_dwordx4 v{t}, {p}")
    if vw < 3:
        E("s_branch L_DMA_DONE")
        E(f"L_DMA{vw+1}:")
E("L_DMA_DONE:")
E("s_barrier")
E(f"s_and_b32 s13, {S_WV}, 3")
E("s_lshl_b32 s13, s13, 8")
E("v_and_b32 v16, 1, v1")
E("v_lshlrev_b32 v16, 7, v16")
E("v_lshl_add_u32 v16, v23, 4, v16")
E("v_add_u32 v16, s13, v16")
E(f"ds_read_b128 v[8:11], v16 offset:{PB}")
E(f"ds_read_b128 v[12:15], v16 offset:{PB+64}")
E("s_waitcnt lgkmcnt(0)")
for kb in range(2):
    for half in range(2):
        tile = kb * 2 + half
        base = 64 + tile * 32
        E(f"s_waitcnt vmcnt({8*(3-tile)+9})")
        for j in range(8):
            c = j // 2
            sel = S_PLO if j % 2 == 0 else S_PHI
            for p in range(4):
                E(f"v_perm_b32 v{24+j*4+p}, v{base+(2*p+1)*4+c}, v{base+(2*p)*4+c}, {sel}")
        E("s_nop 1")
        for j in range(8):
            acc = 192 + (half * 8 + j) * 4
            cc = "0" if kb == 0 else vr(acc, 4)
            E(f"v_mfma_f32_16x16x32_bf16 {vr(acc,4)}, {vr(8+kb*4,4)}, {vr(24+j*4,4)}, {cc}")
        if tile < 3:
            E("s_nop 7")
E("s_nop 7"); E("s_nop 1")
E(f"s_and_b32 s13, {S_WV}, 3")
E("s_lshl_b32 s13, s13, 11")
E("v_lshlrev_b32 v16, 5, v1")
E("v_add_u32 v16, s13, v16")
E("s_mov_b64 exec, 0xffff")
for half in range(2):
    for j in range(8):
        acc = 192 + (half * 8 + j) * 4
        E(f"ds_write_b32 v16, v{acc} offset:{ORED+half*512+j*4}")
        E(f"ds_write_b32 v16, v{acc+1} offset:{ORED+1024+half*512+j*4}")
E("s_mov_b64 exec, -1")
E("s_waitcnt lgkmcnt(0)")
E("s_barrier")
E("s_waitcnt vmcnt(5)")
E("s_barrier")
E("s_waitcnt vmcnt(0)")
E("s_barrier")
E("L_END:")
if STAMP:
    stamp(12)
    E(f"s_cmp_lg_u32 {S_WV}, 0")
    E("s_cbranch_scc1 L_END2")
    E("s_mov_b64 exec, 1")
    E(f"s_lshl_b32 s13, {S_WG}, 6")
    E("s_add_u32 s13, s13, 0x800000")
    E("v_mov_b32 v16, s13")
    for i in range(13):
        E(f"v_mov_b32 v17, s{76+i}")
        E(f"global_store_dword v16, v17, {P_WS} offset:{4*i}")
        E("s_nop 1")
E("L_END2:")

header = open("cdna_kernels/" + NAME + ".s.ref").read().split("\n")
hdr = []
for l in header:
    if l.startswith("; @launch"):
        hdr.append(f"; @launch grid=(256,1,1) block=(512,1,1) lds={LDS_BYTES}")
    elif l.startswith(";"):
        hdr.append(l)
    else:
        break
txt = "\n".join(hdr) + f"""
.amdgcn_target "amdgcn-amd-amdhsa--gfx950"
.text
.globl {NAME}_kernel
.p2align 8
.type {NAME}_kernel,@function
{NAME}_kernel:
""" + "\n".join(out) + f"""
s_endpgm
.section .rodata,"a"
.p2align 6
.amdhsa_kernel {NAME}_kernel
  .amdhsa_next_free_vgpr 256
  .amdhsa_next_free_sgpr 102
  .amdhsa_accum_offset 256
  .amdhsa_group_segment_fixed_size 0
  .amdhsa_kernarg_size 96
  .amdhsa_user_sgpr_count 2
  .amdhsa_user_sgpr_kernarg_segment_ptr 1
  .amdhsa_system_sgpr_workgroup_id_x 1
.end_amdhsa_kernel
"""
dst = sys.argv[1] if len(sys.argv) > 1 else "cdna_kernels/" + NAME + ".s"
open(dst, "w").write(txt)
print("wrote", dst, len(txt))
```

```python
import sys, os

NAME = "sequential_preLN__gqa_block_cached__geglu_ffn__decode"
out = []
def E(s=""):
    out.append("    " + s if s and not s.endswith(":") else s)
def C(s):
    out.append("    ; " + s)

QP_OFF = 0x1000
ML_OFF = 0x22000
HG_OFF = 0x24000
NREP = 16
OP_OFF = 0x40000
AP_OFF = 0x140000
FP_OFF = 0x240000
TRANS = int(os.environ.get("TRANS", "0"))
XN32 = 0
QRED = 2048
QB = 6144
PB = 7168
MLW = 8192
ORED = 8448
REDA = 2048
REDB = 16896
REDD = 16960
QCNT = 17008
HN = 17024
ACT = 18048
GL = 18176
UL = GL + 28672
WDL = UL + 28672
WOL = GL
LDS_BYTES = WDL + 28672
NFFN = 56
F0 = 128
NA = 128
NR = 112
SPIN_LIMIT = 400000

S_WG = "s2"; S_WV = "s3"; S_G = "s4"; S_C = "s5"; S_TAG = "s6"; S_SPIN = "s7"; S_WC = "s15"
P_X = "s[16:17]"; P_K = "s[18:19]"; P_V = "s[20:21]"; P_WQ = "s[22:23]"; P_WO = "s[24:25]"
P_WG = "s[28:29]"; P_WU = "s[30:31]"; P_WD = "s[32:33]"; P_OUT = "s[34:35]"; P_WS = "s[38:39]"
M1 = "s[40:41]"; M2 = "s[42:43]"; M3 = "s[44:45]"
S_PLO = "s46"; S_PHI = "s47"
S_LOG2E = "s50"
M56 = "s[56:57]"; M224 = "s[54:55]"
VTAG = "v6"
STAMP = int(os.environ.get("STAMP", "0"))

def v(i): return f"v{i}"
def vr(a, n): return f"v[{a}:{a+n-1}]"

def stamp(i):
    if not STAMP: return
    E("s_memrealtime s[58:59]")
    E("s_waitcnt lgkmcnt(0)")
    E(f"s_mov_b32 s{76+i}, s58")

def allreduce(op, regs, tmps, upto32=True):
    for s in (1, 2, 4, 8):
        E("s_nop 1")
        for r in regs:
            E(f"{op}_dpp {v(r)}, {v(r)}, {v(r)} row_ror:{s} row_mask:0xf bank_mask:0xf")
    for r, t in zip(regs, tmps):
        E(f"v_mov_b32 {v(t)}, {v(r)}")
    E("s_nop 1")
    for r, t in zip(regs, tmps):
        E(f"v_permlane16_swap_b32 {v(r)}, {v(t)}")
    for r, t in zip(regs, tmps):
        E(f"{op} {v(r)}, {v(r)}, {v(t)}")
    if upto32:
        for r, t in zip(regs, tmps):
            E(f"v_mov_b32 {v(t)}, {v(r)}")
        E("s_nop 1")
        for r, t in zip(regs, tmps):
            E(f"v_permlane32_swap_b32 {v(r)}, {v(t)}")
        for r, t in zip(regs, tmps):
            E(f"{op} {v(r)}, {v(r)}, {v(t)}")

def bf16_round(r, t):
    E(f"v_cvt_pk_bf16_f32 {v(t)}, {v(r)}, {v(r)}")
    E(f"v_lshlrev_b32 {v(r)}, 16, {v(t)}")

def layernorm(pk, f, t):
    for i in range(4):
        E(f"v_lshlrev_b32 {v(f+2*i)}, 16, {v(pk[i])}")
        E(f"v_and_b32 {v(f+2*i+1)}, 0xffff0000, {v(pk[i])}")
    s = t; tmp = t + 1; mean = t + 2; mb = t + 3; sq = t + 4; d = t + 5; sd = t + 6; rc = t + 7
    E(f"v_add_f32 {v(s)}, {v(f)}, {v(f+1)}")
    for i in range(2, 8):
        E(f"v_add_f32 {v(s)}, {v(s)}, {v(f+i)}")
    allreduce("v_add_f32", [s], [tmp])
    E(f"v_mul_f32 {v(mean)}, 0x3b124925, {v(s)}")
    E(f"v_mov_b32 {v(sq)}, 0")
    E(f"s_mov_b64 exec, {M56}")
    for i in range(8):
        E(f"v_sub_f32 {v(d)}, {v(f+i)}, {v(mean)}")
        E(f"v_fmac_f32 {v(sq)}, {v(d)}, {v(d)}")
    E("s_mov_b64 exec, -1")
    allreduce("v_add_f32", [sq], [tmp])
    E(f"v_mul_f32 {v(sq)}, 0x3b124925, {v(sq)}")
    bf16_round(sq, tmp)
    E(f"v_add_f32 {v(sq)}, 0x3727c5ac, {v(sq)}")
    bf16_round(sq, tmp)
    E(f"v_sqrt_f32 {v(sd)}, {v(sq)}")
    E(f"v_mov_b32 {v(mb)}, {v(mean)}")
    bf16_round(mb, tmp)
    bf16_round(sd, tmp)
    E(f"v_rcp_f32 {v(rc)}, {v(sd)}")
    for i in range(8):
        E(f"v_sub_f32 {v(f+i)}, {v(f+i)}, {v(mb)}")
        bf16_round(f + i, tmp)
    for i in range(8):
        E(f"v_mul_f32 {v(d)}, {v(f+i)}, {v(rc)}")
        E(f"v_fma_f32 {v(tmp)}, -{v(d)}, {v(sd)}, {v(f+i)}")
        E(f"v_fma_f32 {v(f+i)}, {v(tmp)}, {v(rc)}, {v(d)}")
        bf16_round(f + i, tmp)

def check_tags(tagregs, acc, tmp):
    first = True
    for i in range(0, len(tagregs), 2):
        a = tagregs[i]; b = tagregs[i + 1]
        if first:
            E(f"v_xor_b32 {v(acc)}, {VTAG}, {v(a)}")
            E(f"v_xor_b32 {v(tmp)}, {VTAG}, {v(b)}")
            E(f"v_or_b32 {v(acc)}, {v(acc)}, {v(tmp)}")
        else:
            E(f"v_xor_b32 {v(tmp)}, {VTAG}, {v(a)}")
            E(f"v_xor_b32 {v(tmp+1)}, {VTAG}, {v(b)}")
            E(f"v_or3_b32 {v(acc)}, {v(acc)}, {v(tmp)}, {v(tmp+1)}")
        first = False
    E(f"v_cmp_ne_u32 vcc, 0, {v(acc)}")

def poll1(loads, tagregs, acc, tmp, name):
    L = f"L_poll_{name}"
    E(f"{L}:")
    for l in loads: E(l)
    E("s_waitcnt vmcnt(0)")
    check_tags(tagregs, acc, tmp)
    E(f"s_cbranch_vccz {L}_ok")
    E(f"s_add_u32 {S_SPIN}, {S_SPIN}, 1")
    E(f"s_cmp_lt_u32 {S_SPIN}, {SPIN_LIMIT}")
    E(f"s_cbranch_scc1 {L}")
    E("s_endpgm")
    E(f"{L}_ok:")

PA, PBB = 64, 80
def poll2(name, mk, nl, canon, acc, tmp, pre=None):
    L = f"L_poll_{name}"
    n = 4 * nl
    tags = lambda b: [b + 4 * i + j for i in range(nl) for j in (1, 3)]
    for l in mk(PA): E(l)
    if pre: pre()
    E(f"{L}:")
    for l in mk(PBB): E(l)
    E(f"s_waitcnt vmcnt({nl})")
    check_tags(tags(PA), acc, tmp)
    E(f"s_cbranch_vccz {L}_okA")
    for l in mk(PA): E(l)
    E(f"s_waitcnt vmcnt({nl})")
    check_tags(tags(PBB), acc, tmp)
    E(f"s_cbranch_vccz {L}_okB")
    E(f"s_add_u32 {S_SPIN}, {S_SPIN}, 1")
    E(f"s_cmp_lt_u32 {S_SPIN}, {SPIN_LIMIT}")
    E(f"s_cbranch_scc1 {L}")
    E("s_endpgm")
    E(f"{L}_okB:")
    for i in range(n): E(f"v_mov_b32 {v(canon+i)}, {v(PBB+i)}")
    E(f"s_branch {L}_done")
    E(f"{L}_okA:")
    for i in range(n): E(f"v_mov_b32 {v(canon+i)}, {v(PA+i)}")
    E(f"{L}_done:")

def poll3(name, mk, nl, canon, acc, tmp, pre=None):
    L = f"L_poll_{name}"
    n = 4 * nl
    tags = lambda b: [b + 4 * i + j for i in range(nl) for j in (1, 3)]
    MISS = "s[92:93]"; MA = "s[94:95]"; MB = "s[96:97]"; SAVE = "s[98:99]"; OK = "s[100:101]"
    E(f"s_mov_b64 {SAVE}, exec")
    E(f"s_mov_b64 {MISS}, exec")
    E(f"s_mov_b64 {MA}, exec")
    for l in mk(PA): E(l)
    if pre:
        E("s_mov_b64 exec, -1")
        pre()
    def half(issue_base, issue_mask, chk_base, chk_mask):
        E(f"s_mov_b64 exec, {MISS}")
        E(f"s_mov_b64 {issue_mask}, {MISS}")
        for l in mk(issue_base): E(l)
        E(f"s_waitcnt vmcnt({nl})")
        E(f"s_mov_b64 exec, {chk_mask}")
        check_tags(tags(chk_base), acc, tmp)
        E(f"s_andn2_b64 {OK}, {chk_mask}, vcc")
        E(f"s_mov_b64 exec, {OK}")
        for i in range(n): E(f"v_mov_b32 {v(canon+i)}, {v(chk_base+i)}")
        E(f"s_andn2_b64 {MISS}, {MISS}, {OK}")
        E(f"s_cbranch_scc0 {L}_done")
    E(f"{L}:")
    half(PBB, MB, PA, MA)
    half(PA, MA, PBB, MB)
    E(f"s_add_u32 {S_SPIN}, {S_SPIN}, 1")
    E(f"s_cmp_lt_u32 {S_SPIN}, {SPIN_LIMIT}")
    E(f"s_cbranch_scc1 {L}")
    E("s_endpgm")
    E(f"{L}_done:")
    E(f"s_mov_b64 exec, {SAVE}")

def qphase(w1, w2):
    E(f"s_waitcnt vmcnt({w1})")
    stamp(1)
    E("v_readfirstlane_b32 s13, v6")
    E("s_mul_i32 s13, s13, 1664525")
    E(f"s_add_u32 {S_TAG}, s13, 1013904223")
    E(f"v_mov_b32 {VTAG}, {S_TAG}")
    layernorm([2, 3, 4, 5], 24, 32)
    E("v_lshlrev_b32 v16, 5, v1")
    E(f"s_mov_b64 exec, {M56}")
    E(f"ds_write_b128 v16, v[24:27] offset:{XN32}")
    E(f"ds_write_b128 v16, v[28:31] offset:{XN32+16}")
    E("s_mov_b64 exec, -1")
    E("s_mul_i32 s13, s8, 448")
    E("v_mul_u32_u24 v16, 28, v18")
    E("v_add_u32 v16, s13, v16")
    E("s_waitcnt lgkmcnt(0)")
    for i in range(7):
        E(f"ds_read_b32 v{24+i}, v16 offset:{XN32+4*i}")
    E("v_mov_b32 v32, 0"); E("v_mov_b32 v33, 0")
    E(f"s_waitcnt vmcnt({w2}) lgkmcnt(0)")
    for i in range(7):
        E(f"v_lshlrev_b32 v34, 16, v{8+i}")
        E(f"v_and_b32 v35, 0xffff0000, v{8+i}")
        E(f"v_fmac_f32 v32, v{24+i}, v34")
        E(f"v_fmac_f32 v33, v{24+i}, v35")
    E("v_lshlrev_b32 v16, 8, v18")
    E("v_lshl_add_u32 v16, v19, 3, v16")
    E(f"ds_write_b64 v16, v[32:33] offset:{QRED}")
    E("v_mov_b32 v16, 0")
    E(f"ds_write_b32 v16, v16 offset:{QCNT}")
    E("s_waitcnt lgkmcnt(0)")
    E("s_barrier")

POLL = poll3 if int(os.environ.get("P3", "1")) else poll2
C("=== prologue ===")
stamp(0)
E(f"s_cmp_ge_u32 {S_WG}, 0x100")
E("s_cbranch_scc1 L_END2")
E("s_load_dwordx16 s[16:31], s[0:1], 0")
E("s_load_dwordx8 s[32:39], s[0:1], 64")
E("v_and_b32 v1, 63, v0")
E("v_lshrrev_b32 v7, 6, v0")
E(f"s_lshr_b32 {S_G}, {S_WG}, 5")
E(f"s_and_b32 {S_C}, {S_WG}, 31")
E(f"v_readfirstlane_b32 {S_WV}, v7")
E(f"s_mov_b32 {S_SPIN}, 0")
E(f"s_min_u32 {S_WC}, {S_WG}, {NR-1}")
E(f"s_sub_u32 s14, {S_WG}, {F0}")
E("s_and_b32 s13, s14, 7")
E("s_mul_i32 s13, s13, 7")
E("s_lshr_b32 s14, s14, 3")
E("s_add_u32 s13, s13, s14")
E(f"s_min_u32 s51, s13, {NFFN-1}")
E("s_mov_b32 s40, 0xffff0000"); E("s_mov_b32 s41, 0")
E("s_mov_b32 s42, 0"); E("s_mov_b32 s43, 0x0000ffff")
E("s_mov_b32 s44, 0"); E("s_mov_b32 s45, 0xffff0000")
E(f"s_mov_b32 {S_PLO}, 0x05040100"); E(f"s_mov_b32 {S_PHI}, 0x07060302")
E(f"s_mov_b32 {S_LOG2E}, 0x3fb8aa3b")
E("s_mov_b32 s56, -1"); E("s_mov_b32 s57, 0x00ffffff")
E("v_cmp_gt_u32 vcc, 0xe0, v0")
E(f"s_mov_b64 {M224}, vcc")
for i in range(2, 6):
    E(f"v_mov_b32 v{i}, 0")
E("v_lshlrev_b32 v16, 4, v1")
E("v_mov_b32 v17, 0")
E(f"s_lshl_b32 s13, {S_WC}, 3")
E("v_mov_b32 v15, s13")
E(f"s_lshr_b32 s8, {S_C}, 3")
E(f"s_and_b32 s9, {S_C}, 7")
E(f"s_mul_i32 s10, s8, {112*8192}")
E(f"s_lshl_b32 s11, {S_G}, 10")
E("s_lshl_b32 s12, s9, 7")
E("s_add_u32 s10, s10, s11")
E("s_add_u32 s10, s10, s12")
E("v_lshrrev_b32 v18, 5, v0")
E("v_and_b32 v19, 31, v0")
E(f"v_mul_u32_u24 v20, {7*8192}, v18")
E("v_lshl_add_u32 v20, v19, 2, v20")
E("v_add_u32 v20, s10, v20")
E(f"s_lshl_b32 s11, {S_G}, 22")
E(f"s_lshl_b32 s12, {S_C}, 17")
E("s_add_u32 s11, s11, s12")
E(f"s_and_b32 s12, {S_WV}, 3")
E("s_lshl_b32 s12, s12, 15")
E("s_add_u32 s11, s11, s12")
E("v_and_b32 v22, 15, v1")
E("v_lshrrev_b32 v23, 4, v1")
E("s_waitcnt lgkmcnt(0)")
E(f"global_load_dword v6, v17, {P_WS} sc1")
E(f"s_mov_b64 exec, {M56}")
E(f"global_load_dwordx4 v[2:5], v16, {P_X}")
E("s_mov_b64 exec, -1")
E(f"global_load_dwordx2 v[62:63], v15, {P_X}")
E("s_mov_b64 s[52:53], s[22:23]")
for i in range(7):
    E(f"global_load_dword v{8+i}, v20, s[52:53]")
    if i < 6:
        E("s_add_u32 s52, s52, 8192")
        E("s_addc_u32 s53, s53, 0")
E("s_barrier")
E(f"s_cmp_ge_u32 {S_WV}, 4")
E("s_cbranch_scc1 L_VPATH")
C("--- K loads ---")
E("v_lshlrev_b32 v21, 9, v22")
E("v_lshl_add_u32 v21, v23, 4, v21")
E("v_add_u32 v21, s11, v21")
NPRE = int(os.environ.get("NPRE", "8"))
def kloads(lo, hi):
    for idx in range(lo, hi):
        T, st = divmod(idx, 8)
        E(f"global_load_dwordx4 {vr(64+idx*4,4)}, v21, {P_K} offset:{st*64}")
        if st == 7 and T < 3:
            E("v_add_u32 v21, 0x2000, v21")
kloads(0, NPRE)
qphase(7 + NPRE, NPRE)
stamp(2)
E(f"s_cmp_lg_u32 {S_WV}, 0")
E("s_cbranch_scc1 L_QPUB_DONE")
C("wave 0: sum 16 row-groups, publish q partial granules")
E("v_lshlrev_b32 v16, 2, v1")
for r in range(16):
    E(f"ds_read_b32 v{24+r}, v16 offset:{QRED+r*256}")
E(f"s_lshl_b32 s13, {S_G}, 2"); E("s_add_u32 s13, s13, s8"); E("s_lshl_b32 s13, s13, 12")
E("s_lshl_b32 s14, s9, 9")
E("s_add_u32 s13, s13, s14")
E(f"s_add_u32 s13, s13, {QP_OFF}")
E("v_lshlrev_b32 v16, 3, v1")
E("v_add_u32 v16, s13, v16")
E("s_waitcnt lgkmcnt(0)")
E("v_add_f32 v40, v24, v25")
for r in range(2, 16):
    E(f"v_add_f32 v40, v40, v{24+r}")
E(f"v_mov_b32 v41, {VTAG}")
E(f"global_store_dwordx2 v16, v[40:41], {P_WS} sc1")
E("L_QPUB_DONE:")
kloads(NPRE, 32)
C("=== K-waves: gather q (quarter per wave), sync K-waves through an LDS counter ===")
E(f"s_lshl_b32 s13, {S_G}, 14")
E(f"s_add_u32 s13, s13, {QP_OFF+4096}")
E("v_lshlrev_b32 v16, 4, v0")
E("v_add_u32 v16, s13, v16")
E("v_add_u32 v17, 0x2000, v16")
poll1([f"global_load_dwordx4 v[24:27], v16, {P_WS} offset:-4096 sc1",
       f"global_load_dwordx4 v[28:31], v16, {P_WS} sc1",
       f"global_load_dwordx4 v[32:35], v17, {P_WS} offset:-4096 sc1",
       f"global_load_dwordx4 v[36:39], v17, {P_WS} sc1"],
      [25, 27, 29, 31, 33, 35, 37, 39], 40, 41, "q")
stamp(3)
E("v_add_f32 v24, v24, v28"); E("v_add_f32 v26, v26, v30")
E("v_add_f32 v24, v24, v32"); E("v_add_f32 v26, v26, v34")
E("v_add_f32 v24, v24, v36"); E("v_add_f32 v26, v26, v38")
E("v_cvt_pk_bf16_f32 v24, v24, v26")
E("v_lshlrev_b32 v16, 2, v0")
E(f"ds_write_b32 v16, v24 offset:{QB}")
E("v_mov_b32 v17, 0"); E("v_mov_b32 v25, 1")
E("s_waitcnt lgkmcnt(0)")
E("s_mov_b64 exec, 1")
E(f"ds_add_u32 v17, v25 offset:{QCNT}")
E("s_mov_b64 exec, -1")
E("L_qsync:")
E(f"ds_read_b32 v26, v17 offset:{QCNT}")
E("s_waitcnt lgkmcnt(0)")
E("v_cmp_gt_u32 vcc, 4, v26")
E("s_cbranch_vccz L_qsync_ok")
E(f"s_add_u32 {S_SPIN}, {S_SPIN}, 1")
E(f"s_cmp_lt_u32 {S_SPIN}, {SPIN_LIMIT*8}")
E("s_cbranch_scc1 L_qsync")
E("s_endpgm")
E("L_qsync_ok:")
E("v_and_b32 v16, 1, v1")
E("v_lshlrev_b32 v16, 9, v16")
E("v_lshl_add_u32 v16, v23, 4, v16")
for st in range(8):
    E(f"ds_read_b128 {vr(192+st*4,4)}, v16 offset:{QB+st*64}")
E("s_waitcnt lgkmcnt(0)")
for T in range(4):
    for st in range(8):
        c = "0" if st == 0 else vr(224 + T * 4, 4)
        E(f"v_mfma_f32_16x16x32_bf16 {vr(224+T*4,4)}, {vr(192+st*4,4)}, {vr(64+(T*8+st)*4,4)}, {c}")
E("s_nop 7"); E("s_nop 1")
E(f"v_cndmask_b32 v24, v224, v228, {M1}"); E(f"v_cndmask_b32 v25, v225, v229, {M1}")
E(f"v_cndmask_b32 v24, v24, v232, {M2}");  E(f"v_cndmask_b32 v25, v25, v233, {M2}")
E(f"v_cndmask_b32 v24, v24, v236, {M3}");  E(f"v_cndmask_b32 v25, v25, v237, {M3}")
E("v_cvt_pk_bf16_f32 v26, v24, v25")
E("v_lshlrev_b32 v24, 16, v26")
E("v_and_b32 v25, 0xffff0000, v26")
E("v_mul_f32 v24, 0x3d800000, v24")
E("v_mul_f32 v25, 0x3d800000, v25")
E("v_mov_b32 v28, v24"); E("v_mov_b32 v29, v25")
allreduce("v_max_f32", [28, 29], [30, 31])
E("v_sub_f32 v24, v24, v28"); E("v_sub_f32 v25, v25, v29")
E(f"v_mul_f32 v24, {S_LOG2E}, v24"); E(f"v_mul_f32 v25, {S_LOG2E}, v25")
E("v_exp_f32 v24, v24"); E("v_exp_f32 v25, v25")
E("s_nop 0")
E("v_cvt_pk_bf16_f32 v26, v24, v25")
E(f"s_lshl_b32 s13, {S_WV}, 8")
E("v_lshlrev_b32 v16, 1, v1")
E("v_add_u32 v16, s13, v16")
E(f"ds_write_b16 v16, v26 offset:{PB}")
E(f"ds_write_b16_d16_hi v16, v26 offset:{PB+128}")
allreduce("v_add_f32", [24, 25], [30, 31])
E("v_mov_b32 v32, v28"); E("v_mov_b32 v33, v24"); E("v_mov_b32 v34, v29"); E("v_mov_b32 v35, v25")
E(f"s_lshl_b32 s13, {S_WV}, 4")
E("v_mov_b32 v16, s13")
E("s_mov_b64 exec, 1")
E(f"ds_write_b128 v16, v[32:35] offset:{MLW}")
E("s_mov_b64 exec, -1")
E("s_waitcnt lgkmcnt(0)")
E("s_barrier")
stamp(4)
C("precompute hop-A addresses while waiting (workgroups < 128): head hh=w>>3, dims (w&7)*32..")
E(f"s_lshr_b32 s8, {S_WG}, 3"); E("s_and_b32 s8, s8, 1")
E(f"s_lshr_b32 s10, {S_WG}, 4"); E("s_and_b32 s10, s10, 7")
E(f"s_and_b32 s9, {S_WG}, 7")
E("s_lshl_b32 s13, s10, 17")
E("s_lshl_b32 s14, s8, 11")
E("s_add_u32 s13, s13, s14")
E("s_lshl_b32 s14, s9, 8")
E("s_add_u32 s13, s13, s14")
E(f"s_add_u32 s13, s13, {OP_OFF}")
E("v_lshrrev_b32 v52, 3, v0")
E("v_and_b32 v53, 7, v0")
E("v_lshlrev_b32 v54, 12, v52")
E("v_lshl_add_u32 v54, v53, 5, v54")
E("v_add_u32 v54, s13, v54")
E("s_lshl_b32 s13, s10, 10")
E("s_lshl_b32 s14, s8, 9")
E("s_add_u32 s13, s13, s14")
E(f"s_add_u32 s13, s13, {ML_OFF}")
E("v_and_b32 v55, 31, v1")
E("v_lshlrev_b32 v55, 4, v55")
E("v_add_u32 v55, s13, v55")
E("v_lshrrev_b32 v16, 7, v0")
E("v_lshlrev_b32 v17, 3, v16")
E("v_and_b32 v18, 127, v0")
E("v_lshlrev_b32 v18, 3, v18")
E("v_lshl_add_u32 v18, v16, 10, v18")
E(f"s_lshl_b32 s13, {S_WG}, 12")
E(f"s_add_u32 s13, s13, {OP_OFF}")
E("v_lshlrev_b32 v56, 4, v0")
E("v_add_u32 v56, s13, v56")
E(f"s_lshl_b32 s13, {S_G}, 10")
E(f"s_lshl_b32 s14, {S_C}, 4")
E("s_add_u32 s13, s13, s14")
E(f"s_add_u32 s13, s13, {ML_OFF}")
E("v_lshlrev_b32 v57, 9, v16")
E("v_add_u32 v57, s13, v57")
E("v_and_b32 v58, 127, v0")
E("v_cmp_eq_u32 vcc, 0, v58")
E("s_mov_b64 s[60:61], vcc")
E("s_barrier")
stamp(5)
C("=== combine the 4 V-wave partials, publish ===")
for w in range(4):
    E(f"ds_read_b64 {vr(24+2*w,2)}, v17 offset:{MLW+16*w}")
for w in range(4):
    E(f"ds_read_b64 {vr(32+2*w,2)}, v18 offset:{ORED+2048*w}")
E("s_waitcnt lgkmcnt(0)")
E("v_max_f32 v40, v24, v26"); E("v_max3_f32 v40, v40, v28, v30")
for w in range(4):
    E(f"v_sub_f32 v{44+w}, v{24+2*w}, v40")
    E(f"v_mul_f32 v{44+w}, {S_LOG2E}, v{44+w}")
    E(f"v_exp_f32 v{44+w}, v{44+w}")
E("s_nop 0")
E("v_mul_f32 v42, v44, v25")
E("v_mul_f32 v48, v44, v32"); E("v_mul_f32 v50, v44, v33")
for w in range(1, 4):
    E(f"v_fmac_f32 v42, v{44+w}, v{25+2*w}")
    E(f"v_fmac_f32 v48, v{44+w}, v{32+2*w}")
    E(f"v_fmac_f32 v50, v{44+w}, v{33+2*w}")
E(f"v_mov_b32 v49, {VTAG}"); E(f"v_mov_b32 v51, {VTAG}")
E(f"v_mov_b32 v41, {VTAG}"); E(f"v_mov_b32 v43, {VTAG}")
E(f"global_store_dwordx4 v56, v[48:51], {P_WS} sc1")
E("s_mov_b64 exec, s[60:61]")
E("s_cbranch_execz L_NOML")
E(f"global_store_dwordx4 v57, v[40:43], {P_WS} sc1")
E("L_NOML:")
E("s_mov_b64 exec, -1")

WP = 96
RAW = 128
def pull_pairs(base_lds):
    E("v_lshlrev_b32 v17, 2, v0")
    E(f"v_add_u32 v17, {base_lds}, v17")
    for h in range(4):
        for i in range(8):
            r = h * 8 + i
            E(f"ds_read_b32 v{RAW+r}, v17 offset:{896*r}")
        E("s_waitcnt lgkmcnt(0)")
    for p in range(16):
        E(f"v_perm_b32 v{WP+2*p}, v{RAW+2*p+1}, v{RAW+2*p}, {S_PLO}")
        E(f"v_perm_b32 v{WP+2*p+1}, v{RAW+2*p+1}, v{RAW+2*p}, {S_PHI}")

def pre_a():
    C("meanwhile: pull wo weights out of LDS")
    pull_pairs(WOL)

def pre_c():
    C("meanwhile (ffn workgroups): pull down weights and gate/up fragments out of LDS")
    E("s_barrier")
    pull_pairs(WDL)
    E("v_lshrrev_b32 v18, 2, v22")
    E("v_lshl_add_u32 v18, v23, 3, v18")
    E("v_lshlrev_b32 v18, 6, v18")
    E("v_and_b32 v17, 1, v1")
    E("v_lshl_add_u32 v18, v17, 3, v18")
    E("v_and_b32 v17, 2, v1")
    E(f"v_mul_u32_u24 v17, {28672//2}, v17")
    E("v_add_u32 v18, v18, v17")
    E(f"s_lshl_b32 s13, {S_WV}, 4")
    E("v_add_u32 v18, s13, v18")
    for s in range(14):
        E(f"ds_read_b64_tr_b16 {vr(192+s*4,2)}, v18 offset:{GL+s*2048}")
        E(f"ds_read_b64_tr_b16 {vr(194+s*4,2)}, v18 offset:{GL+s*2048+256}")
        if s % 4 == 3:
            E("s_waitcnt lgkmcnt(0)")
    E("s_waitcnt lgkmcnt(0)")

E(f"s_cmp_ge_u32 {S_WG}, {NA}")
E("s_cbranch_scc1 L_NOTA")
C("=== hop A ===")
POLL("a", lambda b: [f"global_load_dwordx4 {vr(b,4)}, v54, {P_WS} sc1",
                     f"global_load_dwordx4 {vr(b+4,4)}, v54, {P_WS} offset:16 sc1",
                     f"global_load_dwordx4 {vr(b+8,4)}, v55, {P_WS} sc1"], 3, 24, 40, 41, pre_a)
stamp(6)
E("v_mov_b32 v36, v32")
allreduce("v_max_f32", [36], [37])
E("v_sub_f32 v38, v32, v36")
E(f"v_mul_f32 v38, {S_LOG2E}, v38")
E("v_exp_f32 v38, v38")
E("v_lshlrev_b32 v40, 2, v52")
E("v_mul_f32 v39, v38, v34")
E("ds_bpermute_b32 v41, v40, v38")
allreduce("v_add_f32", [39], [37], upto32=False)
E("s_waitcnt lgkmcnt(0)")
D4 = [24, 26, 28, 30]
for r in D4: E(f"v_mul_f32 v{r}, v41, v{r}")
E("s_nop 1")
for r in D4: E(f"v_add_f32_dpp v{r}, v{r}, v{r} row_ror:8 row_mask:0xf bank_mask:0xf")
for r in D4: E(f"v_mov_b32 v{r+1}, v{r}")
E("s_nop 1")
for r in D4: E(f"v_permlane16_swap_b32 v{r}, v{r+1}")
for r in D4: E(f"v_add_f32 v{r}, v{r}, v{r+1}")
for r in D4: E(f"v_mov_b32 v{r+1}, v{r}")
E("s_nop 1")
for r in D4: E(f"v_permlane32_swap_b32 v{r}, v{r+1}")
for i, r in enumerate(D4): E(f"v_add_f32 v{32+i}, v{r}, v{r+1}")
E(f"s_lshl_b32 s13, {S_WV}, 7")
E("v_lshlrev_b32 v16, 4, v1")
E("v_add_u32 v16, s13, v16")
E("s_mov_b64 exec, 0xff")
E(f"ds_write_b128 v16, v[32:35] offset:{REDA}")
E("s_mov_b64 exec, -1")
E("v_rcp_f32 v39, v39")
E("s_waitcnt lgkmcnt(0)")
E("s_barrier")
E("v_and_b32 v16, 31, v1")
E("v_lshlrev_b32 v16, 2, v16")
for w in range(4):
    E(f"ds_read_b32 v{24+w}, v16 offset:{REDA+128*w}")
E(f"s_mul_i32 s13, {S_WG}, 3584")
E(f"s_add_u32 s13, s13, {AP_OFF}")
E("v_lshlrev_b32 v16, 4, v0")
E("v_add_u32 v16, s13, v16")
E("s_waitcnt lgkmcnt(0)")
E("v_add_f32 v24, v24, v25"); E("v_add_f32 v24, v24, v26"); E("v_add_f32 v24, v24, v27")
E("v_mul_f32 v24, v24, v39")
E("s_nop 1")
E("v_mov_b32_dpp v25, v24 row_shl:1 row_mask:0xf bank_mask:0xf")
E("s_nop 0")
E("v_cvt_pk_bf16_f32 v28, v24, v25")
E("v_mov_b32 v24, 0"); E("v_mov_b32 v26, 0")
for i in range(16):
    E(f"v_readlane_b32 s{60+i}, v28, {2*i}")
E("s_nop 1")
for p in range(16):
    E(f"v_dot2_f32_bf16 v24, s{60+p}, v{WP+2*p}, v24")
    E(f"v_dot2_f32_bf16 v26, s{60+p}, v{WP+2*p+1}, v26")
E(f"v_mov_b32 v25, {VTAG}"); E(f"v_mov_b32 v27, {VTAG}")
E("s_nop 3")
E(f"s_mov_b64 exec, {M224}")
E(f"global_store_dwordx4 v16, v[24:27], {P_WS} sc1")
E("s_mov_b64 exec, -1")
stamp(7)
E(f"s_cmp_lg_u32 {S_WV}, 0")
E("s_cbranch_scc1 L_END")
E(f"s_cmp_ge_u32 {S_WG}, {NR}")
E("s_cbranch_scc1 L_END")
C("=== hop B (wave 0 of reducers): attn columns 4w..4w+3 from 128 producers -> h ===")
E(f"s_lshl_b32 s13, {S_WG}, 5")
E(f"s_add_u32 s13, s13, {AP_OFF}")
E("v_mul_u32_u24 v16, 3584, v1")
E("v_add_u32 v16, s13, v16")
E(f"v_add_u32 v17, {64*3584}, v16")
POLL("b", lambda b: [f"global_load_dwordx4 {vr(b,4)}, v16, {P_WS} sc1",
                     f"global_load_dwordx4 {vr(b+4,4)}, v16, {P_WS} offset:16 sc1",
                     f"global_load_dwordx4 {vr(b+8,4)}, v17, {P_WS} sc1",
                     f"global_load_dwordx4 {vr(b+12,4)}, v17, {P_WS} offset:16 sc1"], 4, 24, 40, 41)
stamp(8)
for i in range(4):
    E(f"v_add_f32 v{24+2*i}, v{24+2*i}, v{32+2*i}")
allreduce("v_add_f32", D4, [25, 27, 29, 31])
E("v_cvt_pk_bf16_f32 v32, v24, v26"); E("v_cvt_pk_bf16_f32 v33, v28, v30")
for i in range(2):
    E(f"v_lshlrev_b32 v24, 16, v{32+i}"); E(f"v_and_b32 v25, 0xffff0000, v{32+i}")
    E(f"v_lshlrev_b32 v28, 16, v{62+i}"); E(f"v_and_b32 v29, 0xffff0000, v{62+i}")
    E("v_add_f32 v24, v24, v28"); E("v_add_f32 v25, v25, v29")
    E(f"v_cvt_pk_bf16_f32 v{248+2*i}, v24, v25")
    E(f"v_mov_b32 v{249+2*i}, {VTAG}")
E(f"s_lshl_b32 s13, {S_WG}, 4")
E(f"s_add_u32 s13, s13, {HG_OFF}")
E("v_lshlrev_b32 v16, 11, v1")
E("v_add_u32 v16, s13, v16")
E(f"s_mov_b64 exec, {(1<<NREP)-1}")
E(f"global_store_dwordx4 v16, v[248:251], {P_WS} sc1")
E("s_mov_b64 exec, -1")
C("=== hop D (wave 0 of reducers): ffn columns -> out ===")
E(f"s_lshl_b32 s13, {S_WG}, 5")
E(f"s_add_u32 s13, s13, {FP_OFF}")
E("v_mul_u32_u24 v16, 3584, v1")
E("v_add_u32 v16, s13, v16")
for r in D4: E(f"v_mov_b32 v{r}, 0")
E(f"s_mov_b64 exec, {M56}")
POLL("d", lambda b: [f"global_load_dwordx4 {vr(b,4)}, v16, {P_WS} sc1",
                     f"global_load_dwordx4 {vr(b+4,4)}, v16, {P_WS} offset:16 sc1"], 2, 24, 40, 41)
stamp(11)
E("s_mov_b64 exec, -1")
allreduce("v_add_f32", D4, [25, 27, 29, 31])
E("v_cvt_pk_bf16_f32 v32, v24, v26"); E("v_cvt_pk_bf16_f32 v33, v28, v30")
for i in range(2):
    E(f"v_lshlrev_b32 v24, 16, v{32+i}"); E(f"v_and_b32 v25, 0xffff0000, v{32+i}")
    E(f"v_lshlrev_b32 v28, 16, v{248+2*i}"); E(f"v_and_b32 v29, 0xffff0000, v{248+2*i}")
    E("v_add_f32 v24, v24, v28"); E("v_add_f32 v25, v25, v29")
    E(f"v_cvt_pk_bf16_f32 v{34+i}, v24, v25")
E(f"s_lshl_b32 s13, {S_WG}, 3")
E("v_mov_b32 v16, s13")
E("s_mov_b64 exec, 1")
E(f"global_store_dwordx2 v16, v[34:35], {P_OUT}")
E(f"s_cmp_lg_u32 {S_WG}, 0")
E("s_cbranch_scc1 L_END")
E("v_mov_b32 v16, 0")
E(f"global_store_dword v16, {VTAG}, {P_WS} sc1")
E("s_branch L_END")

E("L_NOTA:")
E(f"s_cmp_ge_u32 {S_WG}, {F0+NFFN}")
E("s_cbranch_scc1 L_END")
C("=== hop C (ffn workgroups, every K-wave): gather h, LN, gate/up MFMA chain, act ===")
E(f"s_lshl_b32 s13, {S_WG}, 2")
E(f"s_add_u32 s13, s13, {S_WV}")
E(f"s_and_b32 s13, s13, {NREP-1}")
E("s_lshl_b32 s13, s13, 11")
E(f"s_add_u32 s13, s13, {HG_OFF}")
E("v_lshlrev_b32 v16, 5, v1")
E("v_add_u32 v16, s13, v16")
for i in range(24, 32):
    E(f"v_mov_b32 v{i}, 0")
E(f"s_mov_b64 exec, {M56}")
POLL("c", lambda b: [f"global_load_dwordx4 {vr(b,4)}, v16, {P_WS} sc1",
                     f"global_load_dwordx4 {vr(b+4,4)}, v16, {P_WS} offset:16 sc1"], 2, 24, 40, 41, pre_c)
stamp(9)
E("s_mov_b64 exec, -1")
layernorm([24, 26, 28, 30], 32, 40)
for i in range(4):
    E(f"v_cvt_pk_bf16_f32 v{24+i}, v{32+2*i}, v{33+2*i}")
E("v_lshlrev_b32 v16, 4, v1")
E(f"s_mov_b64 exec, {M56}")
E(f"ds_write_b128 v16, v[24:27] offset:{HN}")
E("s_mov_b64 exec, -1")
E("v_lshlrev_b32 v17, 4, v23")
E("s_waitcnt lgkmcnt(0)")
for s in range(14):
    E(f"ds_read_b128 {vr(136+4*s,4)}, v17 offset:{HN+64*s}")
for s in range(14):
    E(f"s_waitcnt lgkmcnt({13-s})")
    c = "0" if s == 0 else "v[24:27]"
    E(f"v_mfma_f32_16x16x32_bf16 v[24:27], {vr(192+4*s,4)}, {vr(136+4*s,4)}, {c}")
E("s_nop 7"); E("s_nop 1")
for r in range(4):
    E(f"v_mov_b32 v{28+r}, v{24+r}")
E("s_nop 1")
for r in range(4):
    E(f"v_permlane32_swap_b32 v{24+r}, v{28+r}")
E("s_mov_b32 s13, 0x3d372713")
E("s_mov_b32 s14, 0x40135761")
for r in range(4):
    bf16_round(24 + r, 40)
    bf16_round(28 + r, 40)
for r in range(4):
    g = 24 + r; tA = 32 + r
    E(f"v_mul_f32 v{tA}, v{g}, v{g}")
    E(f"v_mul_f32 v{tA}, v{tA}, v{g}")
    E(f"v_fma_f32 v{tA}, s13, v{tA}, v{g}")
    E(f"v_mul_f32 v{tA}, s14, v{tA}")
for r in range(4):
    E(f"v_exp_f32 v{32+r}, v{32+r}")
for r in range(4):
    E(f"v_add_f32 v{32+r}, 1.0, v{32+r}")
for r in range(4):
    E(f"v_rcp_f32 v{32+r}, v{32+r}")
for r in range(4):
    E(f"v_sub_f32 v{32+r}, 1.0, v{32+r}")
for r in range(4):
    E(f"v_mul_f32 v{32+r}, v{24+r}, v{32+r}")
    bf16_round(32 + r, 40)
    E(f"v_mul_f32 v{32+r}, v{32+r}, v{28+r}")
E("v_cvt_pk_bf16_f32 v36, v32, v33")
E("v_cvt_pk_bf16_f32 v37, v34, v35")
E("v_lshrrev_b32 v16, 1, v1")
E(f"s_lshl_b32 s13, {S_WV}, 4")
E("v_add_u32 v16, s13, v16")
E("s_mov_b32 s48, 0x00010001"); E("s_mov_b32 s49, 0")
E("s_mov_b64 exec, s[48:49]")
E(f"ds_write_b64 v16, v[36:37] offset:{ACT}")
E("s_mov_b64 exec, -1")
E("s_waitcnt lgkmcnt(0)")
E("s_barrier")
E("v_mov_b32 v16, 0")
for i in range(4):
    E(f"ds_read_b128 {vr(32+4*i,4)}, v16 offset:{ACT+16*i}")
E(f"s_sub_u32 s13, {S_WG}, {F0}")
E("s_mul_i32 s13, s13, 3584")
E(f"s_add_u32 s13, s13, {FP_OFF}")
E("v_lshlrev_b32 v16, 4, v0")
E("v_add_u32 v16, s13, v16")
E("v_mov_b32 v24, 0"); E("v_mov_b32 v26, 0")
E("s_waitcnt lgkmcnt(0)")
for p in range(16):
    E(f"v_dot2_f32_bf16 v24, v{32+p}, v{WP+2*p}, v24")
    E(f"v_dot2_f32_bf16 v26, v{32+p}, v{WP+2*p+1}, v26")
E(f"v_mov_b32 v25, {VTAG}"); E(f"v_mov_b32 v27, {VTAG}")
E("s_nop 3")
E(f"s_mov_b64 exec, {M224}")
E(f"global_store_dwordx4 v16, v[24:27], {P_WS} sc1")
E("s_mov_b64 exec, -1")
stamp(10)
E("s_branch L_END")

E("L_VPATH:")
C("--- V loads ---")
E("v_lshlrev_b32 v21, 12, v23")
E("v_lshl_add_u32 v21, v22, 4, v21")
E("v_add_u32 v21, s11, v21")
def vloads(lo, hi):
    for idx in range(lo, hi):
        tile, i = divmod(idx, 8)
        kb, half = divmod(tile, 2)
        E(f"global_load_dwordx4 {vr(64+idx*4,4)}, v21, {P_V} offset:{i*512+half*256}")
        if idx == 15:
            E("v_add_u32 v21, 0x4000, v21")
vloads(0, NPRE)
qphase(7 + NPRE, NPRE)
C("--- LDS-DMA of tail weights ---")
E(f"s_min_u32 s13, {S_WG}, {NA-1}")
E("s_mul_i32 s13, s13, 28672")
E("v_lshlrev_b32 v56, 4, v1")
E("v_add_u32 v57, s13, v56")
E(f"s_mul_i32 s13, s51, 28672")
E("v_add_u32 v58, s13, v56")
E(f"s_lshl_b32 s13, s51, 6")
E("v_lshrrev_b32 v59, 2, v1")
E("v_mul_u32_u24 v59, 3584, v59")
E("v_and_b32 v60, 3, v1")
E("v_lshl_add_u32 v59, v60, 4, v59")
E("v_add_u32 v59, s13, v59")
wo_l = [("wo", i) for i in range(28)]
ff_l = [("g", i) for i in range(28)] + [("u", i) for i in range(28)] + [("dn", i) for i in range(28)]
def dma_group(tag, lst, per):
    for vw in range(4):
        if vw < 3:
            E(f"s_cmp_lg_u32 {S_WV}, {4+vw}")
            E(f"s_cbranch_scc1 L_DMA{tag}{vw+1}")
        for k, (ty, i) in enumerate(lst[vw*per:(vw+1)*per]):
            t = 60 + (k % 4)
            if ty == "wo":
                E(f"s_mov_b32 m0, {WOL+1024*i}"); E(f"v_add_u32 v{t}, {1024*i}, v57"); p = P_WO
            elif ty == "dn":
                E(f"s_mov_b32 m0, {WDL+1024*i}"); E(f"v_add_u32 v{t}, {1024*i}, v58"); p = P_WD
            elif ty == "g":
                E(f"s_mov_b32 m0, {GL+1024*i}"); E(f"v_add_u32 v{t}, {16*3584*i}, v59"); p = P_WG
            else:
                E(f"s_mov_b32 m0, {UL+1024*i}"); E(f"v_add_u32 v{t}, {16*3584*i}, v59"); p = P_WU
            E(f"global_load_lds_dwordx4 v{t}, {p}")
        if vw < 3:
            E(f"s_branch L_DMA{tag}_DONE")
            E(f"L_DMA{tag}{vw+1}:")
    E(f"L_DMA{tag}_DONE:")
E(f"s_cmp_ge_u32 {S_WG}, {NA}")
E("s_cbranch_scc1 L_NOWDMA")
dma_group("w", wo_l, 7)
E("L_NOWDMA:")
vloads(NPRE, 32)
LATEF = 1
E("s_barrier")
E(f"s_and_b32 s13, {S_WV}, 3")
E("s_lshl_b32 s13, s13, 8")
E("v_and_b32 v16, 1, v1")
E("v_lshlrev_b32 v16, 7, v16")
E("v_lshl_add_u32 v16, v23, 4, v16")
E("v_add_u32 v16, s13, v16")
E(f"ds_read_b128 v[8:11], v16 offset:{PB}")
E(f"ds_read_b128 v[12:15], v16 offset:{PB+64}")
E("s_waitcnt lgkmcnt(0)")
for kb in range(2):
    for half in range(2):
        tile = kb * 2 + half
        base = 64 + tile * 32
        E(f"s_waitcnt vmcnt({8*(3-tile)+(0 if LATEF else 6)})")
        for j in range(8):
            c = j // 2
            sel = S_PLO if j % 2 == 0 else S_PHI
            for p in range(4):
                E(f"v_perm_b32 v{24+j*4+p}, v{base+(2*p+1)*4+c}, v{base+(2*p)*4+c}, {sel}")
        E("s_nop 1")
        for j in range(8):
            acc = 192 + (half * 8 + j) * 4
            cc = "0" if kb == 0 else vr(acc, 4)
            E(f"v_mfma_f32_16x16x32_bf16 {vr(acc,4)}, {vr(8+kb*4,4)}, {vr(24+j*4,4)}, {cc}")
        if tile < 3:
            E("s_nop 7")
E("s_nop 7"); E("s_nop 1")
E(f"s_and_b32 s13, {S_WV}, 3")
E("s_lshl_b32 s13, s13, 11")
E("v_lshlrev_b32 v16, 5, v1")
E("v_add_u32 v16, s13, v16")
E("s_mov_b64 exec, 0xffff")
for half in range(2):
    for j in range(8):
        acc = 192 + (half * 8 + j) * 4
        E(f"ds_write_b32 v16, v{acc} offset:{ORED+half*512+j*4}")
        E(f"ds_write_b32 v16, v{acc+1} offset:{ORED+1024+half*512+j*4}")
E("s_mov_b64 exec, -1")
E("s_waitcnt lgkmcnt(0)")
E("s_barrier")
E(f"s_cmp_lt_u32 {S_WG}, {F0}")
E("s_cbranch_scc1 L_END")
E(f"s_cmp_ge_u32 {S_WG}, {F0+NFFN}")
E("s_cbranch_scc1 L_END")
dma_group("f", ff_l, 21)
E("s_waitcnt vmcnt(0)")
E("s_barrier")
E("L_END:")
if STAMP:
    stamp(12)
    E(f"s_cmp_lg_u32 {S_WV}, 0")
    E("s_cbranch_scc1 L_END2")
    E("s_mov_b64 exec, 1")
    E(f"s_lshl_b32 s13, {S_WG}, 6")
    E("s_add_u32 s13, s13, 0x800000")
    E("v_mov_b32 v16, s13")
    for i in range(13):
        E(f"v_mov_b32 v17, s{76+i}")
        E(f"global_store_dword v16, v17, {P_WS} offset:{4*i}")
        E("s_nop 1")
E("L_END2:")

header = open("cdna_kernels/" + NAME + ".s.ref").read().split("\n")
hdr = []
for l in header:
    if l.startswith("; @launch"):
        hdr.append(f"; @launch grid=(256,1,1) block=(512,1,1) lds={LDS_BYTES}")
    elif l.startswith(";"):
        hdr.append(l)
    else:
        break
txt = "\n".join(hdr) + f"""
.amdgcn_target "amdgcn-amd-amdhsa--gfx950"
.text
.globl {NAME}_kernel
.p2align 8
.type {NAME}_kernel,@function
{NAME}_kernel:
""" + "\n".join(out) + f"""
s_endpgm
.section .rodata,"a"
.p2align 6
.amdhsa_kernel {NAME}_kernel
  .amdhsa_next_free_vgpr 256
  .amdhsa_next_free_sgpr 102
  .amdhsa_accum_offset 256
  .amdhsa_group_segment_fixed_size 0
  .amdhsa_kernarg_size 96
  .amdhsa_user_sgpr_count 2
  .amdhsa_user_sgpr_kernarg_segment_ptr 1
  .amdhsa_system_sgpr_workgroup_id_x 1
.end_amdhsa_kernel
"""
dst = sys.argv[1] if len(sys.argv) > 1 else "cdna_kernels/" + NAME + ".s"
open(dst, "w").write(txt)
print("wrote", dst, len(txt))
```

```python
import sys, os

NAME = "sequential_preLN__gqa_block_cached__geglu_ffn__decode"
out = []
def E(s=""):
    out.append("    " + s if s and not s.endswith(":") else s)
def C(s):
    out.append("    ; " + s)

QP_OFF = 0x1000
ML_OFF = 0x22000
HG_OFF = 0x24000
NREP = 16
OP_OFF = 0x40000
AP_OFF = 0x140000
FP_OFF = 0x240000
TRANS = int(os.environ.get("TRANS", "0"))
XN32 = 0
QRED = 2048
QB = 6144
PB = 7168
MLW = 8192
ORED = 8448
REDA = 2048
REDB = 16896
REDD = 16960
QCNT = 17008
HN = 17024
ACT = 18048
GL = 18176
UL = GL + 28672
WDL = UL + 28672
WOL = GL
LDS_BYTES = WDL + 28672
NFFN = 56
F0 = 128
NA = 128
NR = 112
SPIN_LIMIT = 400000

S_WG = "s2"; S_WV = "s3"; S_G = "s4"; S_C = "s5"; S_TAG = "s6"; S_SPIN = "s7"; S_WC = "s15"
P_X = "s[16:17]"; P_K = "s[18:19]"; P_V = "s[20:21]"; P_WQ = "s[22:23]"; P_WO = "s[24:25]"
P_WG = "s[28:29]"; P_WU = "s[30:31]"; P_WD = "s[32:33]"; P_OUT = "s[34:35]"; P_WS = "s[38:39]"
M1 = "s[40:41]"; M2 = "s[42:43]"; M3 = "s[44:45]"
S_PLO = "s46"; S_PHI = "s47"
S_LOG2E = "s50"
M56 = "s[56:57]"; M224 = "s[54:55]"
VTAG = "v6"
STAMP = int(os.environ.get("STAMP", "0"))

def v(i): return f"v{i}"
def vr(a, n): return f"v[{a}:{a+n-1}]"

def stamp(i):
    if not STAMP: return
    E("s_memrealtime s[58:59]")
    E("s_waitcnt lgkmcnt(0)")
    E(f"s_mov_b32 s{76+i}, s58")

def allreduce(op, regs, tmps, upto32=True):
    for s in (1, 2, 4, 8):
        E("s_nop 1")
        for r in regs:
            E(f"{op}_dpp {v(r)}, {v(r)}, {v(r)} row_ror:{s} row_mask:0xf bank_mask:0xf")
    for r, t in zip(regs, tmps):
        E(f"v_mov_b32 {v(t)}, {v(r)}")
    E("s_nop 1")
    for r, t in zip(regs, tmps):
        E(f"v_permlane16_swap_b32 {v(r)}, {v(t)}")
    for r, t in zip(regs, tmps):
        E(f"{op} {v(r)}, {v(r)}, {v(t)}")
    if upto32:
        for r, t in zip(regs, tmps):
            E(f"v_mov_b32 {v(t)}, {v(r)}")
        E("s_nop 1")
        for r, t in zip(regs, tmps):
            E(f"v_permlane32_swap_b32 {v(r)}, {v(t)}")
        for r, t in zip(regs, tmps):
            E(f"{op} {v(r)}, {v(r)}, {v(t)}")

def bf16_round(r, t):
    E(f"v_cvt_pk_bf16_f32 {v(t)}, {v(r)}, {v(r)}")
    E(f"v_lshlrev_b32 {v(r)}, 16, {v(t)}")

def layernorm(pk, f, t):
    for i in range(4):
        E(f"v_lshlrev_b32 {v(f+2*i)}, 16, {v(pk[i])}")
        E(f"v_and_b32 {v(f+2*i+1)}, 0xffff0000, {v(pk[i])}")
    s = t; tmp = t + 1; mean = t + 2; mb = t + 3; sq = t + 4; d = t + 5; sd = t + 6; rc = t + 7
    E(f"v_add_f32 {v(s)}, {v(f)}, {v(f+1)}")
    for i in range(2, 8):
        E(f"v_add_f32 {v(s)}, {v(s)}, {v(f+i)}")
    allreduce("v_add_f32", [s], [tmp])
    E(f"v_mul_f32 {v(mean)}, 0x3b124925, {v(s)}")
    E(f"v_mov_b32 {v(sq)}, 0")
    E(f"s_mov_b64 exec, {M56}")
    for i in range(8):
        E(f"v_sub_f32 {v(d)}, {v(f+i)}, {v(mean)}")
        E(f"v_fmac_f32 {v(sq)}, {v(d)}, {v(d)}")
    E("s_mov_b64 exec, -1")
    allreduce("v_add_f32", [sq], [tmp])
    E(f"v_mul_f32 {v(sq)}, 0x3b124925, {v(sq)}")
    bf16_round(sq, tmp)
    E(f"v_add_f32 {v(sq)}, 0x3727c5ac, {v(sq)}")
    bf16_round(sq, tmp)
    E(f"v_sqrt_f32 {v(sd)}, {v(sq)}")
    E(f"v_mov_b32 {v(mb)}, {v(mean)}")
    bf16_round(mb, tmp)
    bf16_round(sd, tmp)
    E(f"v_rcp_f32 {v(rc)}, {v(sd)}")
    for i in range(8):
        E(f"v_sub_f32 {v(f+i)}, {v(f+i)}, {v(mb)}")
        bf16_round(f + i, tmp)
    for i in range(8):
        E(f"v_mul_f32 {v(d)}, {v(f+i)}, {v(rc)}")
        E(f"v_fma_f32 {v(tmp)}, -{v(d)}, {v(sd)}, {v(f+i)}")
        E(f"v_fma_f32 {v(f+i)}, {v(tmp)}, {v(rc)}, {v(d)}")
        bf16_round(f + i, tmp)

def check_tags(tagregs, acc, tmp):
    first = True
    for i in range(0, len(tagregs), 2):
        a = tagregs[i]; b = tagregs[i + 1]
        if first:
            E(f"v_xor_b32 {v(acc)}, {VTAG}, {v(a)}")
            E(f"v_xor_b32 {v(tmp)}, {VTAG}, {v(b)}")
            E(f"v_or_b32 {v(acc)}, {v(acc)}, {v(tmp)}")
        else:
            E(f"v_xor_b32 {v(tmp)}, {VTAG}, {v(a)}")
            E(f"v_xor_b32 {v(tmp+1)}, {VTAG}, {v(b)}")
            E(f"v_or3_b32 {v(acc)}, {v(acc)}, {v(tmp)}, {v(tmp+1)}")
        first = False
    E(f"v_cmp_ne_u32 vcc, 0, {v(acc)}")

def poll1(loads, tagregs, acc, tmp, name):
    L = f"L_poll_{name}"
    E(f"{L}:")
    for l in loads: E(l)
    E("s_waitcnt vmcnt(0)")
    check_tags(tagregs, acc, tmp)
    E(f"s_cbranch_vccz {L}_ok")
    E(f"s_add_u32 {S_SPIN}, {S_SPIN}, 1")
    E(f"s_cmp_lt_u32 {S_SPIN}, {SPIN_LIMIT}")
    E(f"s_cbranch_scc1 {L}")
    E("s_endpgm")
    E(f"{L}_ok:")

PA, PBB = 64, 80
def poll2(name, mk, nl, canon, acc, tmp, pre=None):
    L = f"L_poll_{name}"
    n = 4 * nl
    tags = lambda b: [b + 4 * i + j for i in range(nl) for j in (1, 3)]
    for l in mk(PA): E(l)
    if pre: pre()
    E(f"{L}:")
    for l in mk(PBB): E(l)
    E(f"s_waitcnt vmcnt({nl})")
    check_tags(tags(PA), acc, tmp)
    E(f"s_cbranch_vccz {L}_okA")
    for l in mk(PA): E(l)
    E(f"s_waitcnt vmcnt({nl})")
    check_tags(tags(PBB), acc, tmp)
    E(f"s_cbranch_vccz {L}_okB")
    E(f"s_add_u32 {S_SPIN}, {S_SPIN}, 1")
    E(f"s_cmp_lt_u32 {S_SPIN}, {SPIN_LIMIT}")
    E(f"s_cbranch_scc1 {L}")
    E("s_endpgm")
    E(f"{L}_okB:")
    for i in range(n): E(f"v_mov_b32 {v(canon+i)}, {v(PBB+i)}")
    E(f"s_branch {L}_done")
    E(f"{L}_okA:")
    for i in range(n): E(f"v_mov_b32 {v(canon+i)}, {v(PA+i)}")
    E(f"{L}_done:")

def poll3(name, mk, nl, canon, acc, tmp, pre=None):
    L = f"L_poll_{name}"
    n = 4 * nl
    tags = lambda b: [b + 4 * i + j for i in range(nl) for j in (1, 3)]
    MISS = "s[92:93]"; MA = "s[94:95]"; MB = "s[96:97]"; SAVE = "s[98:99]"; OK = "s[100:101]"
    E(f"s_mov_b64 {SAVE}, exec")
    E(f"s_mov_b64 {MISS}, exec")
    E(f"s_mov_b64 {MA}, exec")
    for l in mk(PA): E(l)
    if pre:
        E("s_mov_b64 exec, -1")
        pre()
    def half(issue_base, issue_mask, chk_base, chk_mask):
        E(f"s_mov_b64 exec, {MISS}")
        E(f"s_mov_b64 {issue_mask}, {MISS}")
        for l in mk(issue_base): E(l)
        E(f"s_waitcnt vmcnt({nl})")
        E(f"s_mov_b64 exec, {chk_mask}")
        check_tags(tags(chk_base), acc, tmp)
        E(f"s_andn2_b64 {OK}, {chk_mask}, vcc")
        E(f"s_mov_b64 exec, {OK}")
        for i in range(n): E(f"v_mov_b32 {v(canon+i)}, {v(chk_base+i)}")
        E(f"s_andn2_b64 {MISS}, {MISS}, {OK}")
        E(f"s_cbranch_scc0 {L}_done")
    E(f"{L}:")
    half(PBB, MB, PA, MA)
    half(PA, MA, PBB, MB)
    E(f"s_add_u32 {S_SPIN}, {S_SPIN}, 1")
    E(f"s_cmp_lt_u32 {S_SPIN}, {SPIN_LIMIT}")
    E(f"s_cbranch_scc1 {L}")
    E("s_endpgm")
    E(f"{L}_done:")
    E(f"s_mov_b64 exec, {SAVE}")

def qphase(w1, w2):
    E(f"s_waitcnt vmcnt({w1})")
    stamp(1)
    E("v_readfirstlane_b32 s13, v6")
    E("s_mul_i32 s13, s13, 1664525")
    E(f"s_add_u32 {S_TAG}, s13, 1013904223")
    E(f"v_mov_b32 {VTAG}, {S_TAG}")
    layernorm([2, 3, 4, 5], 24, 32)
    E("v_lshlrev_b32 v16, 5, v1")
    E(f"s_mov_b64 exec, {M56}")
    E(f"ds_write_b128 v16, v[24:27] offset:{XN32}")
    E(f"ds_write_b128 v16, v[28:31] offset:{XN32+16}")
    E("s_mov_b64 exec, -1")
    E("s_mul_i32 s13, s8, 448")
    E("v_mul_u32_u24 v16, 28, v18")
    E("v_add_u32 v16, s13, v16")
    E("s_waitcnt lgkmcnt(0)")
    for i in range(7):
        E(f"ds_read_b32 v{24+i}, v16 offset:{XN32+4*i}")
    E("v_mov_b32 v32, 0"); E("v_mov_b32 v33, 0")
    E(f"s_waitcnt vmcnt({w2}) lgkmcnt(0)")
    for i in range(7):
        E(f"v_lshlrev_b32 v34, 16, v{8+i}")
        E(f"v_and_b32 v35, 0xffff0000, v{8+i}")
        E(f"v_fmac_f32 v32, v{24+i}, v34")
        E(f"v_fmac_f32 v33, v{24+i}, v35")
    E("v_lshlrev_b32 v16, 8, v18")
    E("v_lshl_add_u32 v16, v19, 3, v16")
    E(f"ds_write_b64 v16, v[32:33] offset:{QRED}")
    E("v_mov_b32 v16, 0")
    E(f"ds_write_b32 v16, v16 offset:{QCNT}")
    E("s_waitcnt lgkmcnt(0)")
    E("s_barrier")

POLL = poll3 if int(os.environ.get("P3", "1")) else poll2
C("=== prologue ===")
stamp(0)
E(f"s_cmp_ge_u32 {S_WG}, 0x100")
E("s_cbranch_scc1 L_END2")
E("s_load_dwordx16 s[16:31], s[0:1], 0")
E("s_load_dwordx8 s[32:39], s[0:1], 64")
E("v_and_b32 v1, 63, v0")
E("v_lshrrev_b32 v7, 6, v0")
E(f"s_lshr_b32 {S_G}, {S_WG}, 5")
E(f"s_and_b32 {S_C}, {S_WG}, 31")
E(f"v_readfirstlane_b32 {S_WV}, v7")
E(f"s_mov_b32 {S_SPIN}, 0")
E(f"s_min_u32 {S_WC}, {S_WG}, {NR-1}")
E(f"s_sub_u32 s14, {S_WG}, {F0}")
E("s_and_b32 s13, s14, 7")
E("s_mul_i32 s13, s13, 7")
E("s_lshr_b32 s14, s14, 3")
E("s_add_u32 s13, s13, s14")
E(f"s_min_u32 s51, s13, {NFFN-1}")
E("s_mov_b32 s40, 0xffff0000"); E("s_mov_b32 s41, 0")
E("s_mov_b32 s42, 0"); E("s_mov_b32 s43, 0x0000ffff")
E("s_mov_b32 s44, 0"); E("s_mov_b32 s45, 0xffff0000")
E(f"s_mov_b32 {S_PLO}, 0x05040100"); E(f"s_mov_b32 {S_PHI}, 0x07060302")
E(f"s_mov_b32 {S_LOG2E}, 0x3fb8aa3b")
E("s_mov_b32 s56, -1"); E("s_mov_b32 s57, 0x00ffffff")
E("v_cmp_gt_u32 vcc, 0xe0, v0")
E(f"s_mov_b64 {M224}, vcc")
for i in range(2, 6):
    E(f"v_mov_b32 v{i}, 0")
E("v_lshlrev_b32 v16, 4, v1")
E("v_mov_b32 v17, 0")
E(f"s_lshl_b32 s13, {S_WC}, 3")
E("v_mov_b32 v15, s13")
E(f"s_lshr_b32 s8, {S_C}, 3")
E(f"s_and_b32 s9, {S_C}, 7")
E(f"s_mul_i32 s10, s8, {112*8192}")
E(f"s_lshl_b32 s11, {S_G}, 10")
E("s_lshl_b32 s12, s9, 7")
E("s_add_u32 s10, s10, s11")
E("s_add_u32 s10, s10, s12")
E("v_lshrrev_b32 v18, 5, v0")
E("v_and_b32 v19, 31, v0")
E(f"v_mul_u32_u24 v20, {7*8192}, v18")
E("v_lshl_add_u32 v20, v19, 2, v20")
E("v_add_u32 v20, s10, v20")
E(f"s_lshl_b32 s11, {S_G}, 22")
E(f"s_lshl_b32 s12, {S_C}, 17")
E("s_add_u32 s11, s11, s12")
E(f"s_and_b32 s12, {S_WV}, 3")
E("s_lshl_b32 s12, s12, 15")
E("s_add_u32 s11, s11, s12")
E("v_and_b32 v22, 15, v1")
E("v_lshrrev_b32 v23, 4, v1")
E("s_waitcnt lgkmcnt(0)")
E(f"global_load_dword v6, v17, {P_WS} sc1")
E(f"s_mov_b64 exec, {M56}")
E(f"global_load_dwordx4 v[2:5], v16, {P_X}")
E("s_mov_b64 exec, -1")
E(f"global_load_dwordx2 v[62:63], v15, {P_X}")
E("s_mov_b64 s[52:53], s[22:23]")
for i in range(7):
    E(f"global_load_dword v{8+i}, v20, s[52:53]")
    if i < 6:
        E("s_add_u32 s52, s52, 8192")
        E("s_addc_u32 s53, s53, 0")
E("s_barrier")
E(f"s_cmp_ge_u32 {S_WV}, 4")
E("s_cbranch_scc1 L_VPATH")
C("--- K loads ---")
E("v_lshlrev_b32 v21, 9, v22")
E("v_lshl_add_u32 v21, v23, 4, v21")
E("v_add_u32 v21, s11, v21")
NPRE = int(os.environ.get("NPRE", "8"))
def kloads(lo, hi):
    for idx in range(lo, hi):
        T, st = divmod(idx, 8)
        E(f"global_load_dwordx4 {vr(64+idx*4,4)}, v21, {P_K} offset:{st*64}")
        if st == 7 and T < 3:
            E("v_add_u32 v21, 0x2000, v21")
kloads(0, NPRE)
qphase(7 + NPRE, NPRE)
stamp(2)
E(f"s_cmp_lg_u32 {S_WV}, 0")
E("s_cbranch_scc1 L_QPUB_DONE")
C("wave 0: sum 16 row-groups, publish q partial granules")
E("v_lshlrev_b32 v16, 2, v1")
for r in range(16):
    E(f"ds_read_b32 v{24+r}, v16 offset:{QRED+r*256}")
E(f"s_lshl_b32 s13, {S_G}, 2"); E("s_add_u32 s13, s13, s8"); E("s_lshl_b32 s13, s13, 12")
E("s_lshl_b32 s14, s9, 9")
E("s_add_u32 s13, s13, s14")
E(f"s_add_u32 s13, s13, {QP_OFF}")
E("v_lshlrev_b32 v16, 3, v1")
E("v_add_u32 v16, s13, v16")
E("s_waitcnt lgkmcnt(0)")
E("v_add_f32 v40, v24, v25")
for r in range(2, 16):
    E(f"v_add_f32 v40, v40, v{24+r}")
E(f"v_mov_b32 v41, {VTAG}")
E(f"global_store_dwordx2 v16, v[40:41], {P_WS} sc1")
E("L_QPUB_DONE:")
kloads(NPRE, 32)
C("=== K-waves: gather q (quarter per wave), sync K-waves through an LDS counter ===")
E(f"s_lshl_b32 s13, {S_G}, 14")
E(f"s_add_u32 s13, s13, {QP_OFF+4096}")
E("v_lshlrev_b32 v16, 4, v0")
E("v_add_u32 v16, s13, v16")
E("v_add_u32 v17, 0x2000, v16")
poll1([f"global_load_dwordx4 v[24:27], v16, {P_WS} offset:-4096 sc1",
       f"global_load_dwordx4 v[28:31], v16, {P_WS} sc1",
       f"global_load_dwordx4 v[32:35], v17, {P_WS} offset:-4096 sc1",
       f"global_load_dwordx4 v[36:39], v17, {P_WS} sc1"],
      [25, 27, 29, 31, 33, 35, 37, 39], 40, 41, "q")
stamp(3)
E("v_add_f32 v24, v24, v28"); E("v_add_f32 v26, v26, v30")
E("v_add_f32 v24, v24, v32"); E("v_add_f32 v26, v26, v34")
E("v_add_f32 v24, v24, v36"); E("v_add_f32 v26, v26, v38")
E("v_cvt_pk_bf16_f32 v24, v24, v26")
E("v_lshlrev_b32 v16, 2, v0")
E(f"ds_write_b32 v16, v24 offset:{QB}")
E("v_mov_b32 v17, 0"); E("v_mov_b32 v25, 1")
E("s_waitcnt lgkmcnt(0)")
E("s_mov_b64 exec, 1")
E(f"ds_add_u32 v17, v25 offset:{QCNT}")
E("s_mov_b64 exec, -1")
E("L_qsync:")
E(f"ds_read_b32 v26, v17 offset:{QCNT}")
E("s_waitcnt lgkmcnt(0)")
E("v_cmp_gt_u32 vcc, 4, v26")
E("s_cbranch_vccz L_qsync_ok")
E(f"s_add_u32 {S_SPIN}, {S_SPIN}, 1")
E(f"s_cmp_lt_u32 {S_SPIN}, {SPIN_LIMIT*8}")
E("s_cbranch_scc1 L_qsync")
E("s_endpgm")
E("L_qsync_ok:")
E("v_and_b32 v16, 1, v1")
E("v_lshlrev_b32 v16, 9, v16")
E("v_lshl_add_u32 v16, v23, 4, v16")
for st in range(8):
    E(f"ds_read_b128 {vr(192+st*4,4)}, v16 offset:{QB+st*64}")
E("s_waitcnt lgkmcnt(0)")
for T in range(4):
    for st in range(8):
        c = "0" if st == 0 else vr(224 + T * 4, 4)
        E(f"v_mfma_f32_16x16x32_bf16 {vr(224+T*4,4)}, {vr(192+st*4,4)}, {vr(64+(T*8+st)*4,4)}, {c}")
E("s_nop 7"); E("s_nop 1")
E(f"v_cndmask_b32 v24, v224, v228, {M1}"); E(f"v_cndmask_b32 v25, v225, v229, {M1}")
E(f"v_cndmask_b32 v24, v24, v232, {M2}");  E(f"v_cndmask_b32 v25, v25, v233, {M2}")
E(f"v_cndmask_b32 v24, v24, v236, {M3}");  E(f"v_cndmask_b32 v25, v25, v237, {M3}")
E("v_cvt_pk_bf16_f32 v26, v24, v25")
E("v_lshlrev_b32 v24, 16, v26")
E("v_and_b32 v25, 0xffff0000, v26")
E("v_mul_f32 v24, 0x3d800000, v24")
E("v_mul_f32 v25, 0x3d800000, v25")
E("v_mov_b32 v28, v24"); E("v_mov_b32 v29, v25")
allreduce("v_max_f32", [28, 29], [30, 31])
E("v_sub_f32 v24, v24, v28"); E("v_sub_f32 v25, v25, v29")
E(f"v_mul_f32 v24, {S_LOG2E}, v24"); E(f"v_mul_f32 v25, {S_LOG2E}, v25")
E("v_exp_f32 v24, v24"); E("v_exp_f32 v25, v25")
E("s_nop 0")
E("v_cvt_pk_bf16_f32 v26, v24, v25")
E(f"s_lshl_b32 s13, {S_WV}, 8")
E("v_lshlrev_b32 v16, 1, v1")
E("v_add_u32 v16, s13, v16")
E(f"ds_write_b16 v16, v26 offset:{PB}")
E(f"ds_write_b16_d16_hi v16, v26 offset:{PB+128}")
allreduce("v_add_f32", [24, 25], [30, 31])
E("v_mov_b32 v32, v28"); E("v_mov_b32 v33, v24"); E("v_mov_b32 v34, v29"); E("v_mov_b32 v35, v25")
E(f"s_lshl_b32 s13, {S_WV}, 4")
E("v_mov_b32 v16, s13")
E("s_mov_b64 exec, 1")
E(f"ds_write_b128 v16, v[32:35] offset:{MLW}")
E("s_mov_b64 exec, -1")
E("s_waitcnt lgkmcnt(0)")
E("s_barrier")
stamp(4)
C("precompute hop-A addresses while waiting (workgroups < 128): head hh=w>>3, dims (w&7)*32..")
E(f"s_lshr_b32 s8, {S_WG}, 3"); E("s_and_b32 s8, s8, 1")
E(f"s_lshr_b32 s10, {S_WG}, 4"); E("s_and_b32 s10, s10, 7")
E(f"s_and_b32 s9, {S_WG}, 7")
E("s_lshl_b32 s13, s10, 17")
E("s_lshl_b32 s14, s8, 11")
E("s_add_u32 s13, s13, s14")
E("s_lshl_b32 s14, s9, 8")
E("s_add_u32 s13, s13, s14")
E(f"s_add_u32 s13, s13, {OP_OFF}")
E("v_lshrrev_b32 v52, 3, v0")
E("v_and_b32 v53, 7, v0")
E("v_lshlrev_b32 v54, 12, v52")
E("v_lshl_add_u32 v54, v53, 5, v54")
E("v_add_u32 v54, s13, v54")
E("s_lshl_b32 s13, s10, 10")
E("s_lshl_b32 s14, s8, 9")
E("s_add_u32 s13, s13, s14")
E(f"s_add_u32 s13, s13, {ML_OFF}")
E("v_and_b32 v55, 31, v1")
E("v_lshlrev_b32 v55, 4, v55")
E("v_add_u32 v55, s13, v55")
E("v_lshrrev_b32 v16, 7, v0")
E("v_lshlrev_b32 v17, 3, v16")
E("v_and_b32 v18, 127, v0")
E("v_lshlrev_b32 v18, 3, v18")
E("v_lshl_add_u32 v18, v16, 10, v18")
E(f"s_lshl_b32 s13, {S_WG}, 12")
E(f"s_add_u32 s13, s13, {OP_OFF}")
E("v_lshlrev_b32 v56, 4, v0")
E("v_add_u32 v56, s13, v56")
E(f"s_lshl_b32 s13, {S_G}, 10")
E(f"s_lshl_b32 s14, {S_C}, 4")
E("s_add_u32 s13, s13, s14")
E(f"s_add_u32 s13, s13, {ML_OFF}")
E("v_lshlrev_b32 v57, 9, v16")
E("v_add_u32 v57, s13, v57")
E("v_and_b32 v58, 127, v0")
E("v_cmp_eq_u32 vcc, 0, v58")
E("s_mov_b64 s[60:61], vcc")
E("s_barrier")
stamp(5)
C("=== combine the 4 V-wave partials, publish ===")
for w in range(4):
    E(f"ds_read_b64 {vr(24+2*w,2)}, v17 offset:{MLW+16*w}")
for w in range(4):
    E(f"ds_read_b64 {vr(32+2*w,2)}, v18 offset:{ORED+2048*w}")
E("s_waitcnt lgkmcnt(0)")
E("v_max_f32 v40, v24, v26"); E("v_max3_f32 v40, v40, v28, v30")
for w in range(4):
    E(f"v_sub_f32 v{44+w}, v{24+2*w}, v40")
    E(f"v_mul_f32 v{44+w}, {S_LOG2E}, v{44+w}")
    E(f"v_exp_f32 v{44+w}, v{44+w}")
E("s_nop 0")
E("v_mul_f32 v42, v44, v25")
E("v_mul_f32 v48, v44, v32"); E("v_mul_f32 v50, v44, v33")
for w in range(1, 4):
    E(f"v_fmac_f32 v42, v{44+w}, v{25+2*w}")
    E(f"v_fmac_f32 v48, v{44+w}, v{32+2*w}")
    E(f"v_fmac_f32 v50, v{44+w}, v{33+2*w}")
E(f"v_mov_b32 v49, {VTAG}"); E(f"v_mov_b32 v51, {VTAG}")
E(f"v_mov_b32 v41, {VTAG}"); E(f"v_mov_b32 v43, {VTAG}")
E(f"global_store_dwordx4 v56, v[48:51], {P_WS} sc1")
E("s_mov_b64 exec, s[60:61]")
E("s_cbranch_execz L_NOML")
E(f"global_store_dwordx4 v57, v[40:43], {P_WS} sc1")
E("L_NOML:")
E("s_mov_b64 exec, -1")

WP = 96
RAW = 128
def pull_pairs(base_lds):
    E("v_lshlrev_b32 v17, 2, v0")
    E(f"v_add_u32 v17, {base_lds}, v17")
    for h in range(4):
        for i in range(8):
            r = h * 8 + i
            E(f"ds_read_b32 v{RAW+r}, v17 offset:{896*r}")
        E("s_waitcnt lgkmcnt(0)")
    for p in range(16):
        E(f"v_perm_b32 v{WP+2*p}, v{RAW+2*p+1}, v{RAW+2*p}, {S_PLO}")
        E(f"v_perm_b32 v{WP+2*p+1}, v{RAW+2*p+1}, v{RAW+2*p}, {S_PHI}")

def pre_a():
    C("meanwhile: pull wo weights out of LDS")
    if int(os.environ.get("LATEW", "1")):
        E("s_barrier")
    pull_pairs(WOL)

def pre_c():
    C("meanwhile (ffn workgroups): pull down weights and gate/up fragments out of LDS")
    E("s_barrier")
    pull_pairs(WDL)
    E("v_lshrrev_b32 v18, 2, v22")
    E("v_lshl_add_u32 v18, v23, 3, v18")
    E("v_lshlrev_b32 v18, 6, v18")
    E("v_and_b32 v17, 1, v1")
    E("v_lshl_add_u32 v18, v17, 3, v18")
    E("v_and_b32 v17, 2, v1")
    E(f"v_mul_u32_u24 v17, {28672//2}, v17")
    E("v_add_u32 v18, v18, v17")
    E(f"s_lshl_b32 s13, {S_WV}, 4")
    E("v_add_u32 v18, s13, v18")
    for s in range(14):
        E(f"ds_read_b64_tr_b16 {vr(192+s*4,2)}, v18 offset:{GL+s*2048}")
        E(f"ds_read_b64_tr_b16 {vr(194+s*4,2)}, v18 offset:{GL+s*2048+256}")
        if s % 4 == 3:
            E("s_waitcnt lgkmcnt(0)")
    E("s_waitcnt lgkmcnt(0)")

E(f"s_cmp_ge_u32 {S_WG}, {NA}")
E("s_cbranch_scc1 L_NOTA")
if int(os.environ.get("LATEW", "1")):
    E("s_barrier")
C("=== hop A ===")
POLL("a", lambda b: [f"global_load_dwordx4 {vr(b,4)}, v54, {P_WS} sc1",
                     f"global_load_dwordx4 {vr(b+4,4)}, v54, {P_WS} offset:16 sc1",
                     f"global_load_dwordx4 {vr(b+8,4)}, v55, {P_WS} sc1"], 3, 24, 40, 41, pre_a)
stamp(6)
E("v_mov_b32 v36, v32")
allreduce("v_max_f32", [36], [37])
E("v_sub_f32 v38, v32, v36")
E(f"v_mul_f32 v38, {S_LOG2E}, v38")
E("v_exp_f32 v38, v38")
E("v_lshlrev_b32 v40, 2, v52")
E("v_mul_f32 v39, v38, v34")
E("ds_bpermute_b32 v41, v40, v38")
allreduce("v_add_f32", [39], [37], upto32=False)
E("s_waitcnt lgkmcnt(0)")
D4 = [24, 26, 28, 30]
for r in D4: E(f"v_mul_f32 v{r}, v41, v{r}")
E("s_nop 1")
for r in D4: E(f"v_add_f32_dpp v{r}, v{r}, v{r} row_ror:8 row_mask:0xf bank_mask:0xf")
for r in D4: E(f"v_mov_b32 v{r+1}, v{r}")
E("s_nop 1")
for r in D4: E(f"v_permlane16_swap_b32 v{r}, v{r+1}")
for r in D4: E(f"v_add_f32 v{r}, v{r}, v{r+1}")
for r in D4: E(f"v_mov_b32 v{r+1}, v{r}")
E("s_nop 1")
for r in D4: E(f"v_permlane32_swap_b32 v{r}, v{r+1}")
for i, r in enumerate(D4): E(f"v_add_f32 v{32+i}, v{r}, v{r+1}")
E(f"s_lshl_b32 s13, {S_WV}, 7")
E("v_lshlrev_b32 v16, 4, v1")
E("v_add_u32 v16, s13, v16")
E("s_mov_b64 exec, 0xff")
E(f"ds_write_b128 v16, v[32:35] offset:{REDA}")
E("s_mov_b64 exec, -1")
E("v_rcp_f32 v39, v39")
E("s_waitcnt lgkmcnt(0)")
E("s_barrier")
E("v_and_b32 v16, 31, v1")
E("v_lshlrev_b32 v16, 2, v16")
for w in range(4):
    E(f"ds_read_b32 v{24+w}, v16 offset:{REDA+128*w}")
E(f"s_mul_i32 s13, {S_WG}, 3584")
E(f"s_add_u32 s13, s13, {AP_OFF}")
E("v_lshlrev_b32 v16, 4, v0")
E("v_add_u32 v16, s13, v16")
E("s_waitcnt lgkmcnt(0)")
E("v_add_f32 v24, v24, v25"); E("v_add_f32 v24, v24, v26"); E("v_add_f32 v24, v24, v27")
E("v_mul_f32 v24, v24, v39")
E("s_nop 1")
E("v_mov_b32_dpp v25, v24 row_shl:1 row_mask:0xf bank_mask:0xf")
E("s_nop 0")
E("v_cvt_pk_bf16_f32 v28, v24, v25")
E("v_mov_b32 v24, 0"); E("v_mov_b32 v26, 0")
for i in range(16):
    E(f"v_readlane_b32 s{60+i}, v28, {2*i}")
E("s_nop 1")
for p in range(16):
    E(f"v_dot2_f32_bf16 v24, s{60+p}, v{WP+2*p}, v24")
    E(f"v_dot2_f32_bf16 v26, s{60+p}, v{WP+2*p+1}, v26")
E(f"v_mov_b32 v25, {VTAG}"); E(f"v_mov_b32 v27, {VTAG}")
E("s_nop 3")
E(f"s_mov_b64 exec, {M224}")
E(f"global_store_dwordx4 v16, v[24:27], {P_WS} sc1")
E("s_mov_b64 exec, -1")
stamp(7)
E(f"s_cmp_lg_u32 {S_WV}, 0")
E("s_cbranch_scc1 L_END")
E(f"s_cmp_ge_u32 {S_WG}, {NR}")
E("s_cbranch_scc1 L_END")
C("=== hop B (wave 0 of reducers): attn columns 4w..4w+3 from 128 producers -> h ===")
E(f"s_lshl_b32 s13, {S_WG}, 5")
E(f"s_add_u32 s13, s13, {AP_OFF}")
E("v_mul_u32_u24 v16, 3584, v1")
E("v_add_u32 v16, s13, v16")
E(f"v_add_u32 v17, {64*3584}, v16")
POLL("b", lambda b: [f"global_load_dwordx4 {vr(b,4)}, v16, {P_WS} sc1",
                     f"global_load_dwordx4 {vr(b+4,4)}, v16, {P_WS} offset:16 sc1",
                     f"global_load_dwordx4 {vr(b+8,4)}, v17, {P_WS} sc1",
                     f"global_load_dwordx4 {vr(b+12,4)}, v17, {P_WS} offset:16 sc1"], 4, 24, 40, 41)
stamp(8)
for i in range(4):
    E(f"v_add_f32 v{24+2*i}, v{24+2*i}, v{32+2*i}")
allreduce("v_add_f32", D4, [25, 27, 29, 31])
E("v_cvt_pk_bf16_f32 v32, v24, v26"); E("v_cvt_pk_bf16_f32 v33, v28, v30")
for i in range(2):
    E(f"v_lshlrev_b32 v24, 16, v{32+i}"); E(f"v_and_b32 v25, 0xffff0000, v{32+i}")
    E(f"v_lshlrev_b32 v28, 16, v{62+i}"); E(f"v_and_b32 v29, 0xffff0000, v{62+i}")
    E("v_add_f32 v24, v24, v28"); E("v_add_f32 v25, v25, v29")
    E(f"v_cvt_pk_bf16_f32 v{248+2*i}, v24, v25")
    E(f"v_mov_b32 v{249+2*i}, {VTAG}")
E(f"s_lshl_b32 s13, {S_WG}, 4")
E(f"s_add_u32 s13, s13, {HG_OFF}")
E("v_lshlrev_b32 v16, 11, v1")
E("v_add_u32 v16, s13, v16")
E(f"s_mov_b64 exec, {(1<<NREP)-1}")
E(f"global_store_dwordx4 v16, v[248:251], {P_WS} sc1")
E("s_mov_b64 exec, -1")
C("=== hop D (wave 0 of reducers): ffn columns -> out ===")
E(f"s_lshl_b32 s13, {S_WG}, 5")
E(f"s_add_u32 s13, s13, {FP_OFF}")
E("v_mul_u32_u24 v16, 3584, v1")
E("v_add_u32 v16, s13, v16")
for r in D4: E(f"v_mov_b32 v{r}, 0")
E(f"s_mov_b64 exec, {M56}")
POLL("d", lambda b: [f"global_load_dwordx4 {vr(b,4)}, v16, {P_WS} sc1",
                     f"global_load_dwordx4 {vr(b+4,4)}, v16, {P_WS} offset:16 sc1"], 2, 24, 40, 41)
stamp(11)
E("s_mov_b64 exec, -1")
allreduce("v_add_f32", D4, [25, 27, 29, 31])
E("v_cvt_pk_bf16_f32 v32, v24, v26"); E("v_cvt_pk_bf16_f32 v33, v28, v30")
for i in range(2):
    E(f"v_lshlrev_b32 v24, 16, v{32+i}"); E(f"v_and_b32 v25, 0xffff0000, v{32+i}")
    E(f"v_lshlrev_b32 v28, 16, v{248+2*i}"); E(f"v_and_b32 v29, 0xffff0000, v{248+2*i}")
    E("v_add_f32 v24, v24, v28"); E("v_add_f32 v25, v25, v29")
    E(f"v_cvt_pk_bf16_f32 v{34+i}, v24, v25")
E(f"s_lshl_b32 s13, {S_WG}, 3")
E("v_mov_b32 v16, s13")
E("s_mov_b64 exec, 1")
E(f"global_store_dwordx2 v16, v[34:35], {P_OUT}")
E(f"s_cmp_lg_u32 {S_WG}, 0")
E("s_cbranch_scc1 L_END")
E("v_mov_b32 v16, 0")
E(f"global_store_dword v16, {VTAG}, {P_WS} sc1")
E("s_branch L_END")

E("L_NOTA:")
E(f"s_cmp_ge_u32 {S_WG}, {F0+NFFN}")
E("s_cbranch_scc1 L_END")
C("=== hop C (ffn workgroups, every K-wave): gather h, LN, gate/up MFMA chain, act ===")
E(f"s_lshl_b32 s13, {S_WG}, 2")
E(f"s_add_u32 s13, s13, {S_WV}")
E(f"s_and_b32 s13, s13, {NREP-1}")
E("s_lshl_b32 s13, s13, 11")
E(f"s_add_u32 s13, s13, {HG_OFF}")
E("v_lshlrev_b32 v16, 5, v1")
E("v_add_u32 v16, s13, v16")
for i in range(24, 32):
    E(f"v_mov_b32 v{i}, 0")
E(f"s_mov_b64 exec, {M56}")
POLL("c", lambda b: [f"global_load_dwordx4 {vr(b,4)}, v16, {P_WS} sc1",
                     f"global_load_dwordx4 {vr(b+4,4)}, v16, {P_WS} offset:16 sc1"], 2, 24, 40, 41, pre_c)
stamp(9)
E("s_mov_b64 exec, -1")
layernorm([24, 26, 28, 30], 32, 40)
for i in range(4):
    E(f"v_cvt_pk_bf16_f32 v{24+i}, v{32+2*i}, v{33+2*i}")
E("v_lshlrev_b32 v16, 4, v1")
E(f"s_mov_b64 exec, {M56}")
E(f"ds_write_b128 v16, v[24:27] offset:{HN}")
E("s_mov_b64 exec, -1")
E("v_lshlrev_b32 v17, 4, v23")
E("s_waitcnt lgkmcnt(0)")
for s in range(14):
    E(f"ds_read_b128 {vr(136+4*s,4)}, v17 offset:{HN+64*s}")
for s in range(14):
    E(f"s_waitcnt lgkmcnt({13-s})")
    c = "0" if s == 0 else "v[24:27]"
    E(f"v_mfma_f32_16x16x32_bf16 v[24:27], {vr(192+4*s,4)}, {vr(136+4*s,4)}, {c}")
E("s_nop 7"); E("s_nop 1")
for r in range(4):
    E(f"v_mov_b32 v{28+r}, v{24+r}")
E("s_nop 1")
for r in range(4):
    E(f"v_permlane32_swap_b32 v{24+r}, v{28+r}")
E("s_mov_b32 s13, 0x3d372713")
E("s_mov_b32 s14, 0x40135761")
for r in range(4):
    bf16_round(24 + r, 40)
    bf16_round(28 + r, 40)
for r in range(4):
    g = 24 + r; tA = 32 + r
    E(f"v_mul_f32 v{tA}, v{g}, v{g}")
    E(f"v_mul_f32 v{tA}, v{tA}, v{g}")
    E(f"v_fma_f32 v{tA}, s13, v{tA}, v{g}")
    E(f"v_mul_f32 v{tA}, s14, v{tA}")
for r in range(4):
    E(f"v_exp_f32 v{32+r}, v{32+r}")
for r in range(4):
    E(f"v_add_f32 v{32+r}, 1.0, v{32+r}")
for r in range(4):
    E(f"v_rcp_f32 v{32+r}, v{32+r}")
for r in range(4):
    E(f"v_sub_f32 v{32+r}, 1.0, v{32+r}")
for r in range(4):
    E(f"v_mul_f32 v{32+r}, v{24+r}, v{32+r}")
    bf16_round(32 + r, 40)
    E(f"v_mul_f32 v{32+r}, v{32+r}, v{28+r}")
E("v_cvt_pk_bf16_f32 v36, v32, v33")
E("v_cvt_pk_bf16_f32 v37, v34, v35")
E("v_lshrrev_b32 v16, 1, v1")
E(f"s_lshl_b32 s13, {S_WV}, 4")
E("v_add_u32 v16, s13, v16")
E("s_mov_b32 s48, 0x00010001"); E("s_mov_b32 s49, 0")
E("s_mov_b64 exec, s[48:49]")
E(f"ds_write_b64 v16, v[36:37] offset:{ACT}")
E("s_mov_b64 exec, -1")
E("s_waitcnt lgkmcnt(0)")
E("s_barrier")
E("v_mov_b32 v16, 0")
for i in range(4):
    E(f"ds_read_b128 {vr(32+4*i,4)}, v16 offset:{ACT+16*i}")
E(f"s_sub_u32 s13, {S_WG}, {F0}")
E("s_mul_i32 s13, s13, 3584")
E(f"s_add_u32 s13, s13, {FP_OFF}")
E("v_lshlrev_b32 v16, 4, v0")
E("v_add_u32 v16, s13, v16")
E("v_mov_b32 v24, 0"); E("v_mov_b32 v26, 0")
E("s_waitcnt lgkmcnt(0)")
for p in range(16):
    E(f"v_dot2_f32_bf16 v24, v{32+p}, v{WP+2*p}, v24")
    E(f"v_dot2_f32_bf16 v26, v{32+p}, v{WP+2*p+1}, v26")
E(f"v_mov_b32 v25, {VTAG}"); E(f"v_mov_b32 v27, {VTAG}")
E("s_nop 3")
E(f"s_mov_b64 exec, {M224}")
E(f"global_store_dwordx4 v16, v[24:27], {P_WS} sc1")
E("s_mov_b64 exec, -1")
stamp(10)
E("s_branch L_END")

E("L_VPATH:")
C("--- V loads ---")
E("v_lshlrev_b32 v21, 12, v23")
E("v_lshl_add_u32 v21, v22, 4, v21")
E("v_add_u32 v21, s11, v21")
def vloads(lo, hi):
    for idx in range(lo, hi):
        tile, i = divmod(idx, 8)
        kb, half = divmod(tile, 2)
        E(f"global_load_dwordx4 {vr(64+idx*4,4)}, v21, {P_V} offset:{i*512+half*256}")
        if idx == 15:
            E("v_add_u32 v21, 0x4000, v21")
vloads(0, NPRE)
qphase(7 + NPRE, NPRE)
C("--- LDS-DMA of tail weights ---")
E(f"s_min_u32 s13, {S_WG}, {NA-1}")
E("s_mul_i32 s13, s13, 28672")
E("v_lshlrev_b32 v56, 4, v1")
E("v_add_u32 v57, s13, v56")
E(f"s_mul_i32 s13, s51, 28672")
E("v_add_u32 v58, s13, v56")
E(f"s_lshl_b32 s13, s51, 6")
E("v_lshrrev_b32 v59, 2, v1")
E("v_mul_u32_u24 v59, 3584, v59")
E("v_and_b32 v60, 3, v1")
E("v_lshl_add_u32 v59, v60, 4, v59")
E("v_add_u32 v59, s13, v59")
wo_l = [("wo", i) for i in range(28)]
ff_l = [("g", i) for i in range(28)] + [("u", i) for i in range(28)] + [("dn", i) for i in range(28)]
def dma_group(tag, lst, per):
    for vw in range(4):
        if vw < 3:
            E(f"s_cmp_lg_u32 {S_WV}, {4+vw}")
            E(f"s_cbranch_scc1 L_DMA{tag}{vw+1}")
        for k, (ty, i) in enumerate(lst[vw*per:(vw+1)*per]):
            t = 60 + (k % 4)
            if ty == "wo":
                E(f"s_mov_b32 m0, {WOL+1024*i}"); E(f"v_add_u32 v{t}, {1024*i}, v57"); p = P_WO
            elif ty == "dn":
                E(f"s_mov_b32 m0, {WDL+1024*i}"); E(f"v_add_u32 v{t}, {1024*i}, v58"); p = P_WD
            elif ty == "g":
                E(f"s_mov_b32 m0, {GL+1024*i}"); E(f"v_add_u32 v{t}, {16*3584*i}, v59"); p = P_WG
            else:
                E(f"s_mov_b32 m0, {UL+1024*i}"); E(f"v_add_u32 v{t}, {16*3584*i}, v59"); p = P_WU
            E(f"global_load_lds_dwordx4 v{t}, {p}")
        if vw < 3:
            E(f"s_branch L_DMA{tag}_DONE")
            E(f"L_DMA{tag}{vw+1}:")
    E(f"L_DMA{tag}_DONE:")
LATEW = int(os.environ.get("LATEW", "1"))
if not LATEW:
    E(f"s_cmp_ge_u32 {S_WG}, {NA}")
    E("s_cbranch_scc1 L_NOWDMA")
    dma_group("w", wo_l, 7)
    E("L_NOWDMA:")
vloads(NPRE, 32)
LATEF = 1
E("s_barrier")
E(f"s_and_b32 s13, {S_WV}, 3")
E("s_lshl_b32 s13, s13, 8")
E("v_and_b32 v16, 1, v1")
E("v_lshlrev_b32 v16, 7, v16")
E("v_lshl_add_u32 v16, v23, 4, v16")
E("v_add_u32 v16, s13, v16")
E(f"ds_read_b128 v[8:11], v16 offset:{PB}")
E(f"ds_read_b128 v[12:15], v16 offset:{PB+64}")
E("s_waitcnt lgkmcnt(0)")
for kb in range(2):
    for half in range(2):
        tile = kb * 2 + half
        base = 64 + tile * 32
        E(f"s_waitcnt vmcnt({8*(3-tile)+(0 if LATEF else 6)})")
        for j in range(8):
            c = j // 2
            sel = S_PLO if j % 2 == 0 else S_PHI
            for p in range(4):
                E(f"v_perm_b32 v{24+j*4+p}, v{base+(2*p+1)*4+c}, v{base+(2*p)*4+c}, {sel}")
        E("s_nop 1")
        for j in range(8):
            acc = 192 + (half * 8 + j) * 4
            cc = "0" if kb == 0 else vr(acc, 4)
            E(f"v_mfma_f32_16x16x32_bf16 {vr(acc,4)}, {vr(8+kb*4,4)}, {vr(24+j*4,4)}, {cc}")
        if tile < 3:
            E("s_nop 7")
E("s_nop 7"); E("s_nop 1")
E(f"s_and_b32 s13, {S_WV}, 3")
E("s_lshl_b32 s13, s13, 11")
E("v_lshlrev_b32 v16, 5, v1")
E("v_add_u32 v16, s13, v16")
E("s_mov_b64 exec, 0xffff")
for half in range(2):
    for j in range(8):
        acc = 192 + (half * 8 + j) * 4
        E(f"ds_write_b32 v16, v{acc} offset:{ORED+half*512+j*4}")
        E(f"ds_write_b32 v16, v{acc+1} offset:{ORED+1024+half*512+j*4}")
E("s_mov_b64 exec, -1")
E("s_waitcnt lgkmcnt(0)")
E("s_barrier")
if LATEW:
    E(f"s_cmp_ge_u32 {S_WG}, {NA}")
    E("s_cbranch_scc1 L_NOWDMA")
    E("s_barrier")
    dma_group("w", wo_l, 7)
    E("s_waitcnt vmcnt(0)")
    E("s_barrier")
    E("s_branch L_END")
    E("L_NOWDMA:")
E(f"s_cmp_lt_u32 {S_WG}, {F0}")
E("s_cbranch_scc1 L_END")
E(f"s_cmp_ge_u32 {S_WG}, {F0+NFFN}")
E("s_cbranch_scc1 L_END")
dma_group("f", ff_l, 21)
E("s_waitcnt vmcnt(0)")
E("s_barrier")
E("L_END:")
if STAMP:
    stamp(12)
    E(f"s_cmp_lg_u32 {S_WV}, 0")
    E("s_cbranch_scc1 L_END2")
    E("s_mov_b64 exec, 1")
    E(f"s_lshl_b32 s13, {S_WG}, 6")
    E("s_add_u32 s13, s13, 0x800000")
    E("v_mov_b32 v16, s13")
    for i in range(13):
        E(f"v_mov_b32 v17, s{76+i}")
        E(f"global_store_dword v16, v17, {P_WS} offset:{4*i}")
        E("s_nop 1")
E("L_END2:")

header = open("cdna_kernels/" + NAME + ".s.ref").read().split("\n")
hdr = []
for l in header:
    if l.startswith("; @launch"):
        hdr.append(f"; @launch grid=(256,1,1) block=(512,1,1) lds={LDS_BYTES}")
    elif l.startswith(";"):
        hdr.append(l)
    else:
        break
txt = "\n".join(hdr) + f"""
.amdgcn_target "amdgcn-amd-amdhsa--gfx950"
.text
.globl {NAME}_kernel
.p2align 8
.type {NAME}_kernel,@function
{NAME}_kernel:
""" + "\n".join(out) + f"""
s_endpgm
.section .rodata,"a"
.p2align 6
.amdhsa_kernel {NAME}_kernel
  .amdhsa_next_free_vgpr 256
  .amdhsa_next_free_sgpr 102
  .amdhsa_accum_offset 256
  .amdhsa_group_segment_fixed_size 0
  .amdhsa_kernarg_size 96
  .amdhsa_user_sgpr_count 2
  .amdhsa_user_sgpr_kernarg_segment_ptr 1
  .amdhsa_system_sgpr_workgroup_id_x 1
.end_amdhsa_kernel
"""
dst = sys.argv[1] if len(sys.argv) > 1 else "cdna_kernels/" + NAME + ".s"
open(dst, "w").write(txt)
print("wrote", dst, len(txt))
```

```python
import sys, os

NAME = "sequential_preLN__gqa_block_cached__geglu_ffn__decode"
out = []
def E(s=""):
    out.append("    " + s if s and not s.endswith(":") else s)
def C(s):
    out.append("    ; " + s)

QP_OFF = 0x1000
ML_OFF = 0x22000
HG_OFF = 0x24000
NREP = 16
OP_OFF = 0x40000
AP_OFF = 0x140000
FP_OFF = 0x240000
TRANS = int(os.environ.get("TRANS", "0"))
XN32 = 0
QRED = 2048
QB = 6144
PB = 7168
MLW = 8192
ORED = 8448
REDA = 2048
REDB = 16896
REDD = 16960
QCNT = 17008
HN = 17024
ACT = 18048
GL = 18176
UL = GL + 28672
WDL = UL + 28672
WOL = GL
LDS_BYTES = WDL + 28672
NFFN = 56
F0 = 128
NA = 128
NR = 112
SPIN_LIMIT = 400000

S_WG = "s2"; S_WV = "s3"; S_G = "s4"; S_C = "s5"; S_TAG = "s6"; S_SPIN = "s7"; S_WC = "s15"
P_X = "s[16:17]"; P_K = "s[18:19]"; P_V = "s[20:21]"; P_WQ = "s[22:23]"; P_WO = "s[24:25]"
P_WG = "s[28:29]"; P_WU = "s[30:31]"; P_WD = "s[32:33]"; P_OUT = "s[34:35]"; P_WS = "s[38:39]"
M1 = "s[40:41]"; M2 = "s[42:43]"; M3 = "s[44:45]"
S_PLO = "s46"; S_PHI = "s47"
S_LOG2E = "s50"
M56 = "s[56:57]"; M224 = "s[54:55]"
VTAG = "v6"
STAMP = int(os.environ.get("STAMP", "0"))

def v(i): return f"v{i}"
def vr(a, n): return f"v[{a}:{a+n-1}]"

def stamp(i):
    if not STAMP: return
    E("s_memrealtime s[58:59]")
    E("s_waitcnt lgkmcnt(0)")
    E(f"s_mov_b32 s{76+i}, s58")

def allreduce(op, regs, tmps, upto32=True):
    for s in (1, 2, 4, 8):
        E("s_nop 1")
        for r in regs:
            E(f"{op}_dpp {v(r)}, {v(r)}, {v(r)} row_ror:{s} row_mask:0xf bank_mask:0xf")
    for r, t in zip(regs, tmps):
        E(f"v_mov_b32 {v(t)}, {v(r)}")
    E("s_nop 1")
    for r, t in zip(regs, tmps):
        E(f"v_permlane16_swap_b32 {v(r)}, {v(t)}")
    for r, t in zip(regs, tmps):
        E(f"{op} {v(r)}, {v(r)}, {v(t)}")
    if upto32:
        for r, t in zip(regs, tmps):
            E(f"v_mov_b32 {v(t)}, {v(r)}")
        E("s_nop 1")
        for r, t in zip(regs, tmps):
            E(f"v_permlane32_swap_b32 {v(r)}, {v(t)}")
        for r, t in zip(regs, tmps):
            E(f"{op} {v(r)}, {v(r)}, {v(t)}")

def bf16_round(r, t):
    E(f"v_cvt_pk_bf16_f32 {v(t)}, {v(r)}, {v(r)}")
    E(f"v_lshlrev_b32 {v(r)}, 16, {v(t)}")

def layernorm(pk, f, t):
    for i in range(4):
        E(f"v_lshlrev_b32 {v(f+2*i)}, 16, {v(pk[i])}")
        E(f"v_and_b32 {v(f+2*i+1)}, 0xffff0000, {v(pk[i])}")
    s = t; tmp = t + 1; mean = t + 2; mb = t + 3; sq = t + 4; d = t + 5; sd = t + 6; rc = t + 7
    E(f"v_add_f32 {v(s)}, {v(f)}, {v(f+1)}")
    for i in range(2, 8):
        E(f"v_add_f32 {v(s)}, {v(s)}, {v(f+i)}")
    allreduce("v_add_f32", [s], [tmp])
    E(f"v_mul_f32 {v(mean)}, 0x3b124925, {v(s)}")
    E(f"v_mov_b32 {v(sq)}, 0")
    E(f"s_mov_b64 exec, {M56}")
    for i in range(8):
        E(f"v_sub_f32 {v(d)}, {v(f+i)}, {v(mean)}")
        E(f"v_fmac_f32 {v(sq)}, {v(d)}, {v(d)}")
    E("s_mov_b64 exec, -1")
    allreduce("v_add_f32", [sq], [tmp])
    E(f"v_mul_f32 {v(sq)}, 0x3b124925, {v(sq)}")
    bf16_round(sq, tmp)
    E(f"v_add_f32 {v(sq)}, 0x3727c5ac, {v(sq)}")
    bf16_round(sq, tmp)
    E(f"v_sqrt_f32 {v(sd)}, {v(sq)}")
    E(f"v_mov_b32 {v(mb)}, {v(mean)}")
    bf16_round(mb, tmp)
    bf16_round(sd, tmp)
    E(f"v_rcp_f32 {v(rc)}, {v(sd)}")
    for i in range(8):
        E(f"v_sub_f32 {v(f+i)}, {v(f+i)}, {v(mb)}")
        bf16_round(f + i, tmp)
    for i in range(8):
        E(f"v_mul_f32 {v(d)}, {v(f+i)}, {v(rc)}")
        E(f"v_fma_f32 {v(tmp)}, -{v(d)}, {v(sd)}, {v(f+i)}")
        E(f"v_fma_f32 {v(f+i)}, {v(tmp)}, {v(rc)}, {v(d)}")
        bf16_round(f + i, tmp)

def check_tags(tagregs, acc, tmp):
    first = True
    for i in range(0, len(tagregs), 2):
        a = tagregs[i]; b = tagregs[i + 1]
        if first:
            E(f"v_xor_b32 {v(acc)}, {VTAG}, {v(a)}")
            E(f"v_xor_b32 {v(tmp)}, {VTAG}, {v(b)}")
            E(f"v_or_b32 {v(acc)}, {v(acc)}, {v(tmp)}")
        else:
            E(f"v_xor_b32 {v(tmp)}, {VTAG}, {v(a)}")
            E(f"v_xor_b32 {v(tmp+1)}, {VTAG}, {v(b)}")
            E(f"v_or3_b32 {v(acc)}, {v(acc)}, {v(tmp)}, {v(tmp+1)}")
        first = False
    E(f"v_cmp_ne_u32 vcc, 0, {v(acc)}")

def poll1(loads, tagregs, acc, tmp, name):
    L = f"L_poll_{name}"
    E(f"{L}:")
    for l in loads: E(l)
    E("s_waitcnt vmcnt(0)")
    check_tags(tagregs, acc, tmp)
    E(f"s_cbranch_vccz {L}_ok")
    E(f"s_add_u32 {S_SPIN}, {S_SPIN}, 1")
    E(f"s_cmp_lt_u32 {S_SPIN}, {SPIN_LIMIT}")
    E(f"s_cbranch_scc1 {L}")
    E("s_endpgm")
    E(f"{L}_ok:")

PA, PBB = 64, 80
def poll2(name, mk, nl, canon, acc, tmp, pre=None):
    L = f"L_poll_{name}"
    n = 4 * nl
    tags = lambda b: [b + 4 * i + j for i in range(nl) for j in (1, 3)]
    for l in mk(PA): E(l)
    if pre: pre()
    E(f"{L}:")
    for l in mk(PBB): E(l)
    E(f"s_waitcnt vmcnt({nl})")
    check_tags(tags(PA), acc, tmp)
    E(f"s_cbranch_vccz {L}_okA")
    for l in mk(PA): E(l)
    E(f"s_waitcnt vmcnt({nl})")
    check_tags(tags(PBB), acc, tmp)
    E(f"s_cbranch_vccz {L}_okB")
    E(f"s_add_u32 {S_SPIN}, {S_SPIN}, 1")
    E(f"s_cmp_lt_u32 {S_SPIN}, {SPIN_LIMIT}")
    E(f"s_cbranch_scc1 {L}")
    E("s_endpgm")
    E(f"{L}_okB:")
    for i in range(n): E(f"v_mov_b32 {v(canon+i)}, {v(PBB+i)}")
    E(f"s_branch {L}_done")
    E(f"{L}_okA:")
    for i in range(n): E(f"v_mov_b32 {v(canon+i)}, {v(PA+i)}")
    E(f"{L}_done:")

def poll3(name, mk, nl, canon, acc, tmp, pre=None):
    L = f"L_poll_{name}"
    n = 4 * nl
    tags = lambda b: [b + 4 * i + j for i in range(nl) for j in (1, 3)]
    MISS = "s[92:93]"; MA = "s[94:95]"; MB = "s[96:97]"; SAVE = "s[98:99]"; OK = "s[100:101]"
    E(f"s_mov_b64 {SAVE}, exec")
    E(f"s_mov_b64 {MISS}, exec")
    E(f"s_mov_b64 {MA}, exec")
    for l in mk(PA): E(l)
    if pre:
        E("s_mov_b64 exec, -1")
        pre()
    def half(issue_base, issue_mask, chk_base, chk_mask):
        E(f"s_mov_b64 exec, {MISS}")
        E(f"s_mov_b64 {issue_mask}, {MISS}")
        for l in mk(issue_base): E(l)
        E(f"s_waitcnt vmcnt({nl})")
        E(f"s_mov_b64 exec, {chk_mask}")
        check_tags(tags(chk_base), acc, tmp)
        E(f"s_andn2_b64 {OK}, {chk_mask}, vcc")
        E(f"s_mov_b64 exec, {OK}")
        for i in range(n): E(f"v_mov_b32 {v(canon+i)}, {v(chk_base+i)}")
        E(f"s_andn2_b64 {MISS}, {MISS}, {OK}")
        E(f"s_cbranch_scc0 {L}_done")
    E(f"{L}:")
    half(PBB, MB, PA, MA)
    half(PA, MA, PBB, MB)
    SL = int(os.environ.get("SLEEP", "16"))
    if SL:
        E(f"s_cmp_lg_u64 {MISS}, {SAVE}")
        E(f"s_cbranch_scc1 {L}_nosl")
        E(f"s_sleep {SL}")
        E(f"{L}_nosl:")
    E(f"s_add_u32 {S_SPIN}, {S_SPIN}, 1")
    E(f"s_cmp_lt_u32 {S_SPIN}, {SPIN_LIMIT}")
    E(f"s_cbranch_scc1 {L}")
    E("s_endpgm")
    E(f"{L}_done:")
    E(f"s_mov_b64 exec, {SAVE}")

def qphase(w1, w2):
    E(f"s_waitcnt vmcnt({w1})")
    stamp(1)
    E("v_readfirstlane_b32 s13, v6")
    E("s_mul_i32 s13, s13, 1664525")
    E(f"s_add_u32 {S_TAG}, s13, 1013904223")
    E(f"v_mov_b32 {VTAG}, {S_TAG}")
    layernorm([2, 3, 4, 5], 24, 32)
    E("v_lshlrev_b32 v16, 5, v1")
    E(f"s_mov_b64 exec, {M56}")
    E(f"ds_write_b128 v16, v[24:27] offset:{XN32}")
    E(f"ds_write_b128 v16, v[28:31] offset:{XN32+16}")
    E("s_mov_b64 exec, -1")
    E("s_mul_i32 s13, s8, 448")
    E("v_mul_u32_u24 v16, 28, v18")
    E("v_add_u32 v16, s13, v16")
    E("s_waitcnt lgkmcnt(0)")
    for i in range(7):
        E(f"ds_read_b32 v{24+i}, v16 offset:{XN32+4*i}")
    E("v_mov_b32 v32, 0"); E("v_mov_b32 v33, 0")
    E(f"s_waitcnt vmcnt({w2}) lgkmcnt(0)")
    for i in range(7):
        E(f"v_lshlrev_b32 v34, 16, v{8+i}")
        E(f"v_and_b32 v35, 0xffff0000, v{8+i}")
        E(f"v_fmac_f32 v32, v{24+i}, v34")
        E(f"v_fmac_f32 v33, v{24+i}, v35")
    E("v_lshlrev_b32 v16, 8, v18")
    E("v_lshl_add_u32 v16, v19, 3, v16")
    E(f"ds_write_b64 v16, v[32:33] offset:{QRED}")
    E("v_mov_b32 v16, 0")
    E(f"ds_write_b32 v16, v16 offset:{QCNT}")
    E("s_waitcnt lgkmcnt(0)")
    E("s_barrier")

POLL = poll3 if int(os.environ.get("P3", "1")) else poll2
C("=== prologue ===")
stamp(0)
E(f"s_cmp_ge_u32 {S_WG}, 0x100")
E("s_cbranch_scc1 L_END2")
E("s_load_dwordx16 s[16:31], s[0:1], 0")
E("s_load_dwordx8 s[32:39], s[0:1], 64")
E("v_and_b32 v1, 63, v0")
E("v_lshrrev_b32 v7, 6, v0")
E(f"s_lshr_b32 {S_G}, {S_WG}, 5")
E(f"s_and_b32 {S_C}, {S_WG}, 31")
E(f"v_readfirstlane_b32 {S_WV}, v7")
E(f"s_mov_b32 {S_SPIN}, 0")
E(f"s_min_u32 {S_WC}, {S_WG}, {NR-1}")
E(f"s_sub_u32 s14, {S_WG}, {F0}")
E("s_and_b32 s13, s14, 7")
E("s_mul_i32 s13, s13, 7")
E("s_lshr_b32 s14, s14, 3")
E("s_add_u32 s13, s13, s14")
E(f"s_min_u32 s51, s13, {NFFN-1}")
E("s_mov_b32 s40, 0xffff0000"); E("s_mov_b32 s41, 0")
E("s_mov_b32 s42, 0"); E("s_mov_b32 s43, 0x0000ffff")
E("s_mov_b32 s44, 0"); E("s_mov_b32 s45, 0xffff0000")
E(f"s_mov_b32 {S_PLO}, 0x05040100"); E(f"s_mov_b32 {S_PHI}, 0x07060302")
E(f"s_mov_b32 {S_LOG2E}, 0x3fb8aa3b")
E("s_mov_b32 s56, -1"); E("s_mov_b32 s57, 0x00ffffff")
E("v_cmp_gt_u32 vcc, 0xe0, v0")
E(f"s_mov_b64 {M224}, vcc")
for i in range(2, 6):
    E(f"v_mov_b32 v{i}, 0")
E("v_lshlrev_b32 v16, 4, v1")
E("v_mov_b32 v17, 0")
E(f"s_lshl_b32 s13, {S_WC}, 3")
E("v_mov_b32 v15, s13")
E(f"s_lshr_b32 s8, {S_C}, 3")
E(f"s_and_b32 s9, {S_C}, 7")
E(f"s_mul_i32 s10, s8, {112*8192}")
E(f"s_lshl_b32 s11, {S_G}, 10")
E("s_lshl_b32 s12, s9, 7")
E("s_add_u32 s10, s10, s11")
E("s_add_u32 s10, s10, s12")
E("v_lshrrev_b32 v18, 5, v0")
E("v_and_b32 v19, 31, v0")
E(f"v_mul_u32_u24 v20, {7*8192}, v18")
E("v_lshl_add_u32 v20, v19, 2, v20")
E("v_add_u32 v20, s10, v20")
E(f"s_lshl_b32 s11, {S_G}, 22")
E(f"s_lshl_b32 s12, {S_C}, 17")
E("s_add_u32 s11, s11, s12")
E(f"s_and_b32 s12, {S_WV}, 3")
E("s_lshl_b32 s12, s12, 15")
E("s_add_u32 s11, s11, s12")
E("v_and_b32 v22, 15, v1")
E("v_lshrrev_b32 v23, 4, v1")
E("s_waitcnt lgkmcnt(0)")
E(f"global_load_dword v6, v17, {P_WS} sc1")
E(f"s_mov_b64 exec, {M56}")
E(f"global_load_dwordx4 v[2:5], v16, {P_X}")
E("s_mov_b64 exec, -1")
E(f"global_load_dwordx2 v[62:63], v15, {P_X}")
E("s_mov_b64 s[52:53], s[22:23]")
for i in range(7):
    E(f"global_load_dword v{8+i}, v20, s[52:53]")
    if i < 6:
        E("s_add_u32 s52, s52, 8192")
        E("s_addc_u32 s53, s53, 0")
E("s_barrier")
E(f"s_cmp_ge_u32 {S_WV}, 4")
E("s_cbranch_scc1 L_VPATH")
C("--- K loads ---")
E("v_lshlrev_b32 v21, 9, v22")
E("v_lshl_add_u32 v21, v23, 4, v21")
E("v_add_u32 v21, s11, v21")
NPRE = int(os.environ.get("NPRE", "8"))
def kloads(lo, hi):
    for idx in range(lo, hi):
        T, st = divmod(idx, 8)
        E(f"global_load_dwordx4 {vr(64+idx*4,4)}, v21, {P_K} offset:{st*64}")
        if st == 7 and T < 3:
            E("v_add_u32 v21, 0x2000, v21")
kloads(0, NPRE)
qphase(7 + NPRE, NPRE)
stamp(2)
E(f"s_cmp_lg_u32 {S_WV}, 0")
E("s_cbranch_scc1 L_QPUB_DONE")
C("wave 0: sum 16 row-groups, publish q partial granules")
E("v_lshlrev_b32 v16, 2, v1")
for r in range(16):
    E(f"ds_read_b32 v{24+r}, v16 offset:{QRED+r*256}")
E(f"s_lshl_b32 s13, {S_G}, 2"); E("s_add_u32 s13, s13, s8"); E("s_lshl_b32 s13, s13, 12")
E("s_lshl_b32 s14, s9, 9")
E("s_add_u32 s13, s13, s14")
E(f"s_add_u32 s13, s13, {QP_OFF}")
E("v_lshlrev_b32 v16, 3, v1")
E("v_add_u32 v16, s13, v16")
E("s_waitcnt lgkmcnt(0)")
E("v_add_f32 v40, v24, v25")
for r in range(2, 16):
    E(f"v_add_f32 v40, v40, v{24+r}")
E(f"v_mov_b32 v41, {VTAG}")
E(f"global_store_dwordx2 v16, v[40:41], {P_WS} sc1")
E("L_QPUB_DONE:")
kloads(NPRE, 32)
C("=== K-waves: gather q (quarter per wave), sync K-waves through an LDS counter ===")
E(f"s_lshl_b32 s13, {S_G}, 14")
E(f"s_add_u32 s13, s13, {QP_OFF+4096}")
E("v_lshlrev_b32 v16, 4, v0")
E("v_add_u32 v16, s13, v16")
E("v_add_u32 v17, 0x2000, v16")
poll1([f"global_load_dwordx4 v[24:27], v16, {P_WS} offset:-4096 sc1",
       f"global_load_dwordx4 v[28:31], v16, {P_WS} sc1",
       f"global_load_dwordx4 v[32:35], v17, {P_WS} offset:-4096 sc1",
       f"global_load_dwordx4 v[36:39], v17, {P_WS} sc1"],
      [25, 27, 29, 31, 33, 35, 37, 39], 40, 41, "q")
stamp(3)
E("v_add_f32 v24, v24, v28"); E("v_add_f32 v26, v26, v30")
E("v_add_f32 v24, v24, v32"); E("v_add_f32 v26, v26, v34")
E("v_add_f32 v24, v24, v36"); E("v_add_f32 v26, v26, v38")
E("v_cvt_pk_bf16_f32 v24, v24, v26")
E("v_lshlrev_b32 v16, 2, v0")
E(f"ds_write_b32 v16, v24 offset:{QB}")
E("v_mov_b32 v17, 0"); E("v_mov_b32 v25, 1")
E("s_waitcnt lgkmcnt(0)")
E("s_mov_b64 exec, 1")
E(f"ds_add_u32 v17, v25 offset:{QCNT}")
E("s_mov_b64 exec, -1")
E("L_qsync:")
E(f"ds_read_b32 v26, v17 offset:{QCNT}")
E("s_waitcnt lgkmcnt(0)")
E("v_cmp_gt_u32 vcc, 4, v26")
E("s_cbranch_vccz L_qsync_ok")
E(f"s_add_u32 {S_SPIN}, {S_SPIN}, 1")
E(f"s_cmp_lt_u32 {S_SPIN}, {SPIN_LIMIT*8}")
E("s_cbranch_scc1 L_qsync")
E("s_endpgm")
E("L_qsync_ok:")
E("v_and_b32 v16, 1, v1")
E("v_lshlrev_b32 v16, 9, v16")
E("v_lshl_add_u32 v16, v23, 4, v16")
for st in range(8):
    E(f"ds_read_b128 {vr(192+st*4,4)}, v16 offset:{QB+st*64}")
E("s_waitcnt lgkmcnt(0)")
for T in range(4):
    for st in range(8):
        c = "0" if st == 0 else vr(224 + T * 4, 4)
        E(f"v_mfma_f32_16x16x32_bf16 {vr(224+T*4,4)}, {vr(192+st*4,4)}, {vr(64+(T*8+st)*4,4)}, {c}")
E("s_nop 7"); E("s_nop 1")
E(f"v_cndmask_b32 v24, v224, v228, {M1}"); E(f"v_cndmask_b32 v25, v225, v229, {M1}")
E(f"v_cndmask_b32 v24, v24, v232, {M2}");  E(f"v_cndmask_b32 v25, v25, v233, {M2}")
E(f"v_cndmask_b32 v24, v24, v236, {M3}");  E(f"v_cndmask_b32 v25, v25, v237, {M3}")
E("v_cvt_pk_bf16_f32 v26, v24, v25")
E("v_lshlrev_b32 v24, 16, v26")
E("v_and_b32 v25, 0xffff0000, v26")
E("v_mul_f32 v24, 0x3d800000, v24")
E("v_mul_f32 v25, 0x3d800000, v25")
E("v_mov_b32 v28, v24"); E("v_mov_b32 v29, v25")
allreduce("v_max_f32", [28, 29], [30, 31])
E("v_sub_f32 v24, v24, v28"); E("v_sub_f32 v25, v25, v29")
E(f"v_mul_f32 v24, {S_LOG2E}, v24"); E(f"v_mul_f32 v25, {S_LOG2E}, v25")
E("v_exp_f32 v24, v24"); E("v_exp_f32 v25, v25")
E("s_nop 0")
E("v_cvt_pk_bf16_f32 v26, v24, v25")
E(f"s_lshl_b32 s13, {S_WV}, 8")
E("v_lshlrev_b32 v16, 1, v1")
E("v_add_u32 v16, s13, v16")
E(f"ds_write_b16 v16, v26 offset:{PB}")
E(f"ds_write_b16_d16_hi v16, v26 offset:{PB+128}")
allreduce("v_add_f32", [24, 25], [30, 31])
E("v_mov_b32 v32, v28"); E("v_mov_b32 v33, v24"); E("v_mov_b32 v34, v29"); E("v_mov_b32 v35, v25")
E(f"s_lshl_b32 s13, {S_WV}, 4")
E("v_mov_b32 v16, s13")
E("s_mov_b64 exec, 1")
E(f"ds_write_b128 v16, v[32:35] offset:{MLW}")
E("s_mov_b64 exec, -1")
E("s_waitcnt lgkmcnt(0)")
E("s_barrier")
stamp(4)
C("precompute hop-A addresses while waiting (workgroups < 128): head hh=w>>3, dims (w&7)*32..")
E(f"s_lshr_b32 s8, {S_WG}, 3"); E("s_and_b32 s8, s8, 1")
E(f"s_lshr_b32 s10, {S_WG}, 4"); E("s_and_b32 s10, s10, 7")
E(f"s_and_b32 s9, {S_WG}, 7")
E("s_lshl_b32 s13, s10, 17")
E("s_lshl_b32 s14, s8, 11")
E("s_add_u32 s13, s13, s14")
E("s_lshl_b32 s14, s9, 8")
E("s_add_u32 s13, s13, s14")
E(f"s_add_u32 s13, s13, {OP_OFF}")
E("v_lshrrev_b32 v52, 3, v0")
E("v_and_b32 v53, 7, v0")
E("v_lshlrev_b32 v54, 12, v52")
E("v_lshl_add_u32 v54, v53, 5, v54")
E("v_add_u32 v54, s13, v54")
E("s_lshl_b32 s13, s10, 10")
E("s_lshl_b32 s14, s8, 9")
E("s_add_u32 s13, s13, s14")
E(f"s_add_u32 s13, s13, {ML_OFF}")
E("v_and_b32 v55, 31, v1")
E("v_lshlrev_b32 v55, 4, v55")
E("v_add_u32 v55, s13, v55")
E("v_lshrrev_b32 v16, 7, v0")
E("v_lshlrev_b32 v17, 3, v16")
E("v_and_b32 v18, 127, v0")
E("v_lshlrev_b32 v18, 3, v18")
E("v_lshl_add_u32 v18, v16, 10, v18")
E(f"s_lshl_b32 s13, {S_WG}, 12")
E(f"s_add_u32 s13, s13, {OP_OFF}")
E("v_lshlrev_b32 v56, 4, v0")
E("v_add_u32 v56, s13, v56")
E(f"s_lshl_b32 s13, {S_G}, 10")
E(f"s_lshl_b32 s14, {S_C}, 4")
E("s_add_u32 s13, s13, s14")
E(f"s_add_u32 s13, s13, {ML_OFF}")
E("v_lshlrev_b32 v57, 9, v16")
E("v_add_u32 v57, s13, v57")
E("v_and_b32 v58, 127, v0")
E("v_cmp_eq_u32 vcc, 0, v58")
E("s_mov_b64 s[60:61], vcc")
E("s_barrier")
stamp(5)
C("=== combine the 4 V-wave partials, publish ===")
for w in range(4):
    E(f"ds_read_b64 {vr(24+2*w,2)}, v17 offset:{MLW+16*w}")
for w in range(4):
    E(f"ds_read_b64 {vr(32+2*w,2)}, v18 offset:{ORED+2048*w}")
E("s_waitcnt lgkmcnt(0)")
E("v_max_f32 v40, v24, v26"); E("v_max3_f32 v40, v40, v28, v30")
for w in range(4):
    E(f"v_sub_f32 v{44+w}, v{24+2*w}, v40")
    E(f"v_mul_f32 v{44+w}, {S_LOG2E}, v{44+w}")
    E(f"v_exp_f32 v{44+w}, v{44+w}")
E("s_nop 0")
E("v_mul_f32 v42, v44, v25")
E("v_mul_f32 v48, v44, v32"); E("v_mul_f32 v50, v44, v33")
for w in range(1, 4):
    E(f"v_fmac_f32 v42, v{44+w}, v{25+2*w}")
    E(f"v_fmac_f32 v48, v{44+w}, v{32+2*w}")
    E(f"v_fmac_f32 v50, v{44+w}, v{33+2*w}")
E(f"v_mov_b32 v49, {VTAG}"); E(f"v_mov_b32 v51, {VTAG}")
E(f"v_mov_b32 v41, {VTAG}"); E(f"v_mov_b32 v43, {VTAG}")
E(f"global_store_dwordx4 v56, v[48:51], {P_WS} sc1")
E("s_mov_b64 exec, s[60:61]")
E("s_cbranch_execz L_NOML")
E(f"global_store_dwordx4 v57, v[40:43], {P_WS} sc1")
E("L_NOML:")
E("s_mov_b64 exec, -1")

WP = 96
RAW = 128
def pull_pairs(base_lds):
    E("v_lshlrev_b32 v17, 2, v0")
    E(f"v_add_u32 v17, {base_lds}, v17")
    for h in range(4):
        for i in range(8):
            r = h * 8 + i
            E(f"ds_read_b32 v{RAW+r}, v17 offset:{896*r}")
        E("s_waitcnt lgkmcnt(0)")
    for p in range(16):
        E(f"v_perm_b32 v{WP+2*p}, v{RAW+2*p+1}, v{RAW+2*p}, {S_PLO}")
        E(f"v_perm_b32 v{WP+2*p+1}, v{RAW+2*p+1}, v{RAW+2*p}, {S_PHI}")

def pre_a():
    C("meanwhile: pull wo weights out of LDS")
    if int(os.environ.get("LATEW", "1")):
        E("s_barrier")
    pull_pairs(WOL)

def pre_c():
    C("meanwhile (ffn workgroups): pull down weights and gate/up fragments out of LDS")
    E("s_barrier")
    pull_pairs(WDL)
    E("v_lshrrev_b32 v18, 2, v22")
    E("v_lshl_add_u32 v18, v23, 3, v18")
    E("v_lshlrev_b32 v18, 6, v18")
    E("v_and_b32 v17, 1, v1")
    E("v_lshl_add_u32 v18, v17, 3, v18")
    E("v_and_b32 v17, 2, v1")
    E(f"v_mul_u32_u24 v17, {28672//2}, v17")
    E("v_add_u32 v18, v18, v17")
    E(f"s_lshl_b32 s13, {S_WV}, 4")
    E("v_add_u32 v18, s13, v18")
    for s in range(14):
        E(f"ds_read_b64_tr_b16 {vr(192+s*4,2)}, v18 offset:{GL+s*2048}")
        E(f"ds_read_b64_tr_b16 {vr(194+s*4,2)}, v18 offset:{GL+s*2048+256}")
        if s % 4 == 3:
            E("s_waitcnt lgkmcnt(0)")
    E("s_waitcnt lgkmcnt(0)")

E(f"s_cmp_ge_u32 {S_WG}, {NA}")
E("s_cbranch_scc1 L_NOTA")
if int(os.environ.get("LATEW", "1")):
    E("s_barrier")
C("=== hop A ===")
POLL("a", lambda b: [f"global_load_dwordx4 {vr(b,4)}, v54, {P_WS} sc1",
                     f"global_load_dwordx4 {vr(b+4,4)}, v54, {P_WS} offset:16 sc1",
                     f"global_load_dwordx4 {vr(b+8,4)}, v55, {P_WS} sc1"], 3, 24, 40, 41, pre_a)
stamp(6)
E("v_mov_b32 v36, v32")
allreduce("v_max_f32", [36], [37])
E("v_sub_f32 v38, v32, v36")
E(f"v_mul_f32 v38, {S_LOG2E}, v38")
E("v_exp_f32 v38, v38")
E("v_lshlrev_b32 v40, 2, v52")
E("v_mul_f32 v39, v38, v34")
E("ds_bpermute_b32 v41, v40, v38")
allreduce("v_add_f32", [39], [37], upto32=False)
E("s_waitcnt lgkmcnt(0)")
D4 = [24, 26, 28, 30]
for r in D4: E(f"v_mul_f32 v{r}, v41, v{r}")
E("s_nop 1")
for r in D4: E(f"v_add_f32_dpp v{r}, v{r}, v{r} row_ror:8 row_mask:0xf bank_mask:0xf")
for r in D4: E(f"v_mov_b32 v{r+1}, v{r}")
E("s_nop 1")
for r in D4: E(f"v_permlane16_swap_b32 v{r}, v{r+1}")
for r in D4: E(f"v_add_f32 v{r}, v{r}, v{r+1}")
for r in D4: E(f"v_mov_b32 v{r+1}, v{r}")
E("s_nop 1")
for r in D4: E(f"v_permlane32_swap_b32 v{r}, v{r+1}")
for i, r in enumerate(D4): E(f"v_add_f32 v{32+i}, v{r}, v{r+1}")
E(f"s_lshl_b32 s13, {S_WV}, 7")
E("v_lshlrev_b32 v16, 4, v1")
E("v_add_u32 v16, s13, v16")
E("s_mov_b64 exec, 0xff")
E(f"ds_write_b128 v16, v[32:35] offset:{REDA}")
E("s_mov_b64 exec, -1")
E("v_rcp_f32 v39, v39")
E("s_waitcnt lgkmcnt(0)")
E("s_barrier")
E("v_and_b32 v16, 31, v1")
E("v_lshlrev_b32 v16, 2, v16")
for w in range(4):
    E(f"ds_read_b32 v{24+w}, v16 offset:{REDA+128*w}")
E(f"s_mul_i32 s13, {S_WG}, 3584")
E(f"s_add_u32 s13, s13, {AP_OFF}")
E("v_lshlrev_b32 v16, 4, v0")
E("v_add_u32 v16, s13, v16")
E("s_waitcnt lgkmcnt(0)")
E("v_add_f32 v24, v24, v25"); E("v_add_f32 v24, v24, v26"); E("v_add_f32 v24, v24, v27")
E("v_mul_f32 v24, v24, v39")
E("s_nop 1")
E("v_mov_b32_dpp v25, v24 row_shl:1 row_mask:0xf bank_mask:0xf")
E("s_nop 0")
E("v_cvt_pk_bf16_f32 v28, v24, v25")
E("v_mov_b32 v24, 0"); E("v_mov_b32 v26, 0")
for i in range(16):
    E(f"v_readlane_b32 s{60+i}, v28, {2*i}")
E("s_nop 1")
for p in range(16):
    E(f"v_dot2_f32_bf16 v24, s{60+p}, v{WP+2*p}, v24")
    E(f"v_dot2_f32_bf16 v26, s{60+p}, v{WP+2*p+1}, v26")
E(f"v_mov_b32 v25, {VTAG}"); E(f"v_mov_b32 v27, {VTAG}")
E("s_nop 3")
E(f"s_mov_b64 exec, {M224}")
E(f"global_store_dwordx4 v16, v[24:27], {P_WS} sc1")
E("s_mov_b64 exec, -1")
stamp(7)
E(f"s_cmp_lg_u32 {S_WV}, 0")
E("s_cbranch_scc1 L_END")
E(f"s_cmp_ge_u32 {S_WG}, {NR}")
E("s_cbranch_scc1 L_END")
C("=== hop B (wave 0 of reducers): attn columns 4w..4w+3 from 128 producers -> h ===")
E(f"s_lshl_b32 s13, {S_WG}, 5")
E(f"s_add_u32 s13, s13, {AP_OFF}")
E("v_mul_u32_u24 v16, 3584, v1")
E("v_add_u32 v16, s13, v16")
E(f"v_add_u32 v17, {64*3584}, v16")
POLL("b", lambda b: [f"global_load_dwordx4 {vr(b,4)}, v16, {P_WS} sc1",
                     f"global_load_dwordx4 {vr(b+4,4)}, v16, {P_WS} offset:16 sc1",
                     f"global_load_dwordx4 {vr(b+8,4)}, v17, {P_WS} sc1",
                     f"global_load_dwordx4 {vr(b+12,4)}, v17, {P_WS} offset:16 sc1"], 4, 24, 40, 41)
stamp(8)
for i in range(4):
    E(f"v_add_f32 v{24+2*i}, v{24+2*i}, v{32+2*i}")
allreduce("v_add_f32", D4, [25, 27, 29, 31])
E("v_cvt_pk_bf16_f32 v32, v24, v26"); E("v_cvt_pk_bf16_f32 v33, v28, v30")
for i in range(2):
    E(f"v_lshlrev_b32 v24, 16, v{32+i}"); E(f"v_and_b32 v25, 0xffff0000, v{32+i}")
    E(f"v_lshlrev_b32 v28, 16, v{62+i}"); E(f"v_and_b32 v29, 0xffff0000, v{62+i}")
    E("v_add_f32 v24, v24, v28"); E("v_add_f32 v25, v25, v29")
    E(f"v_cvt_pk_bf16_f32 v{248+2*i}, v24, v25")
    E(f"v_mov_b32 v{249+2*i}, {VTAG}")
E(f"s_lshl_b32 s13, {S_WG}, 4")
E(f"s_add_u32 s13, s13, {HG_OFF}")
E("v_lshlrev_b32 v16, 11, v1")
E("v_add_u32 v16, s13, v16")
E(f"s_mov_b64 exec, {(1<<NREP)-1}")
E(f"global_store_dwordx4 v16, v[248:251], {P_WS} sc1")
E("s_mov_b64 exec, -1")
C("=== hop D (wave 0 of reducers): ffn columns -> out ===")
E(f"s_lshl_b32 s13, {S_WG}, 5")
E(f"s_add_u32 s13, s13, {FP_OFF}")
E("v_mul_u32_u24 v16, 3584, v1")
E("v_add_u32 v16, s13, v16")
for r in D4: E(f"v_mov_b32 v{r}, 0")
E(f"s_mov_b64 exec, {M56}")
POLL("d", lambda b: [f"global_load_dwordx4 {vr(b,4)}, v16, {P_WS} sc1",
                     f"global_load_dwordx4 {vr(b+4,4)}, v16, {P_WS} offset:16 sc1"], 2, 24, 40, 41)
stamp(11)
E("s_mov_b64 exec, -1")
allreduce("v_add_f32", D4, [25, 27, 29, 31])
E("v_cvt_pk_bf16_f32 v32, v24, v26"); E("v_cvt_pk_bf16_f32 v33, v28, v30")
for i in range(2):
    E(f"v_lshlrev_b32 v24, 16, v{32+i}"); E(f"v_and_b32 v25, 0xffff0000, v{32+i}")
    E(f"v_lshlrev_b32 v28, 16, v{248+2*i}"); E(f"v_and_b32 v29, 0xffff0000, v{248+2*i}")
    E("v_add_f32 v24, v24, v28"); E("v_add_f32 v25, v25, v29")
    E(f"v_cvt_pk_bf16_f32 v{34+i}, v24, v25")
E(f"s_lshl_b32 s13, {S_WG}, 3")
E("v_mov_b32 v16, s13")
E("s_mov_b64 exec, 1")
E(f"global_store_dwordx2 v16, v[34:35], {P_OUT}")
E(f"s_cmp_lg_u32 {S_WG}, 0")
E("s_cbranch_scc1 L_END")
E("v_mov_b32 v16, 0")
E(f"global_store_dword v16, {VTAG}, {P_WS} sc1")
E("s_branch L_END")

E("L_NOTA:")
E(f"s_cmp_ge_u32 {S_WG}, {F0+NFFN}")
E("s_cbranch_scc1 L_END")
C("=== hop C (ffn workgroups, every K-wave): gather h, LN, gate/up MFMA chain, act ===")
E(f"s_lshl_b32 s13, {S_WG}, 2")
E(f"s_add_u32 s13, s13, {S_WV}")
E(f"s_and_b32 s13, s13, {NREP-1}")
E("s_lshl_b32 s13, s13, 11")
E(f"s_add_u32 s13, s13, {HG_OFF}")
E("v_lshlrev_b32 v16, 5, v1")
E("v_add_u32 v16, s13, v16")
for i in range(24, 32):
    E(f"v_mov_b32 v{i}, 0")
E(f"s_mov_b64 exec, {M56}")
POLL("c", lambda b: [f"global_load_dwordx4 {vr(b,4)}, v16, {P_WS} sc1",
                     f"global_load_dwordx4 {vr(b+4,4)}, v16, {P_WS} offset:16 sc1"], 2, 24, 40, 41, pre_c)
stamp(9)
E("s_mov_b64 exec, -1")
layernorm([24, 26, 28, 30], 32, 40)
for i in range(4):
    E(f"v_cvt_pk_bf16_f32 v{24+i}, v{32+2*i}, v{33+2*i}")
E("v_lshlrev_b32 v16, 4, v1")
E(f"s_mov_b64 exec, {M56}")
E(f"ds_write_b128 v16, v[24:27] offset:{HN}")
E("s_mov_b64 exec, -1")
E("v_lshlrev_b32 v17, 4, v23")
E("s_waitcnt lgkmcnt(0)")
for s in range(14):
    E(f"ds_read_b128 {vr(136+4*s,4)}, v17 offset:{HN+64*s}")
for s in range(14):
    E(f"s_waitcnt lgkmcnt({13-s})")
    c = "0" if s == 0 else "v[24:27]"
    E(f"v_mfma_f32_16x16x32_bf16 v[24:27], {vr(192+4*s,4)}, {vr(136+4*s,4)}, {c}")
E("s_nop 7"); E("s_nop 1")
for r in range(4):
    E(f"v_mov_b32 v{28+r}, v{24+r}")
E("s_nop 1")
for r in range(4):
    E(f"v_permlane32_swap_b32 v{24+r}, v{28+r}")
E("s_mov_b32 s13, 0x3d372713")
E("s_mov_b32 s14, 0x40135761")
for r in range(4):
    bf16_round(24 + r, 40)
    bf16_round(28 + r, 40)
for r in range(4):
    g = 24 + r; tA = 32 + r
    E(f"v_mul_f32 v{tA}, v{g}, v{g}")
    E(f"v_mul_f32 v{tA}, v{tA}, v{g}")
    E(f"v_fma_f32 v{tA}, s13, v{tA}, v{g}")
    E(f"v_mul_f32 v{tA}, s14, v{tA}")
for r in range(4):
    E(f"v_exp_f32 v{32+r}, v{32+r}")
for r in range(4):
    E(f"v_add_f32 v{32+r}, 1.0, v{32+r}")
for r in range(4):
    E(f"v_rcp_f32 v{32+r}, v{32+r}")
for r in range(4):
    E(f"v_sub_f32 v{32+r}, 1.0, v{32+r}")
for r in range(4):
    E(f"v_mul_f32 v{32+r}, v{24+r}, v{32+r}")
    bf16_round(32 + r, 40)
    E(f"v_mul_f32 v{32+r}, v{32+r}, v{28+r}")
E("v_cvt_pk_bf16_f32 v36, v32, v33")
E("v_cvt_pk_bf16_f32 v37, v34, v35")
E("v_lshrrev_b32 v16, 1, v1")
E(f"s_lshl_b32 s13, {S_WV}, 4")
E("v_add_u32 v16, s13, v16")
E("s_mov_b32 s48, 0x00010001"); E("s_mov_b32 s49, 0")
E("s_mov_b64 exec, s[48:49]")
E(f"ds_write_b64 v16, v[36:37] offset:{ACT}")
E("s_mov_b64 exec, -1")
E("s_waitcnt lgkmcnt(0)")
E("s_barrier")
E("v_mov_b32 v16, 0")
for i in range(4):
    E(f"ds_read_b128 {vr(32+4*i,4)}, v16 offset:{ACT+16*i}")
E(f"s_sub_u32 s13, {S_WG}, {F0}")
E("s_mul_i32 s13, s13, 3584")
E(f"s_add_u32 s13, s13, {FP_OFF}")
E("v_lshlrev_b32 v16, 4, v0")
E("v_add_u32 v16, s13, v16")
E("v_mov_b32 v24, 0"); E("v_mov_b32 v26, 0")
E("s_waitcnt lgkmcnt(0)")
for p in range(16):
    E(f"v_dot2_f32_bf16 v24, v{32+p}, v{WP+2*p}, v24")
    E(f"v_dot2_f32_bf16 v26, v{32+p}, v{WP+2*p+1}, v26")
E(f"v_mov_b32 v25, {VTAG}"); E(f"v_mov_b32 v27, {VTAG}")
E("s_nop 3")
E(f"s_mov_b64 exec, {M224}")
E(f"global_store_dwordx4 v16, v[24:27], {P_WS} sc1")
E("s_mov_b64 exec, -1")
stamp(10)
E("s_branch L_END")

E("L_VPATH:")
C("--- V loads ---")
E("v_lshlrev_b32 v21, 12, v23")
E("v_lshl_add_u32 v21, v22, 4, v21")
E("v_add_u32 v21, s11, v21")
def vloads(lo, hi):
    for idx in range(lo, hi):
        tile, i = divmod(idx, 8)
        kb, half = divmod(tile, 2)
        E(f"global_load_dwordx4 {vr(64+idx*4,4)}, v21, {P_V} offset:{i*512+half*256}")
        if idx == 15:
            E("v_add_u32 v21, 0x4000, v21")
vloads(0, NPRE)
qphase(7 + NPRE, NPRE)
C("--- LDS-DMA of tail weights ---")
E(f"s_min_u32 s13, {S_WG}, {NA-1}")
E("s_mul_i32 s13, s13, 28672")
E("v_lshlrev_b32 v56, 4, v1")
E("v_add_u32 v57, s13, v56")
E(f"s_mul_i32 s13, s51, 28672")
E("v_add_u32 v58, s13, v56")
E(f"s_lshl_b32 s13, s51, 6")
E("v_lshrrev_b32 v59, 2, v1")
E("v_mul_u32_u24 v59, 3584, v59")
E("v_and_b32 v60, 3, v1")
E("v_lshl_add_u32 v59, v60, 4, v59")
E("v_add_u32 v59, s13, v59")
wo_l = [("wo", i) for i in range(28)]
ff_l = [("g", i) for i in range(28)] + [("u", i) for i in range(28)] + [("dn", i) for i in range(28)]
def dma_group(tag, lst, per):
    for vw in range(4):
        if vw < 3:
            E(f"s_cmp_lg_u32 {S_WV}, {4+vw}")
            E(f"s_cbranch_scc1 L_DMA{tag}{vw+1}")
        for k, (ty, i) in enumerate(lst[vw*per:(vw+1)*per]):
            t = 60 + (k % 4)
            if ty == "wo":
                E(f"s_mov_b32 m0, {WOL+1024*i}"); E(f"v_add_u32 v{t}, {1024*i}, v57"); p = P_WO
            elif ty == "dn":
                E(f"s_mov_b32 m0, {WDL+1024*i}"); E(f"v_add_u32 v{t}, {1024*i}, v58"); p = P_WD
            elif ty == "g":
                E(f"s_mov_b32 m0, {GL+1024*i}"); E(f"v_add_u32 v{t}, {16*3584*i}, v59"); p = P_WG
            else:
                E(f"s_mov_b32 m0, {UL+1024*i}"); E(f"v_add_u32 v{t}, {16*3584*i}, v59"); p = P_WU
            E(f"global_load_lds_dwordx4 v{t}, {p}")
        if vw < 3:
            E(f"s_branch L_DMA{tag}_DONE")
            E(f"L_DMA{tag}{vw+1}:")
    E(f"L_DMA{tag}_DONE:")
LATEW = int(os.environ.get("LATEW", "1"))
if not LATEW:
    E(f"s_cmp_ge_u32 {S_WG}, {NA}")
    E("s_cbranch_scc1 L_NOWDMA")
    dma_group("w", wo_l, 7)
    E("L_NOWDMA:")
vloads(NPRE, 32)
LATEF = 1
E("s_barrier")
E(f"s_and_b32 s13, {S_WV}, 3")
E("s_lshl_b32 s13, s13, 8")
E("v_and_b32 v16, 1, v1")
E("v_lshlrev_b32 v16, 7, v16")
E("v_lshl_add_u32 v16, v23, 4, v16")
E("v_add_u32 v16, s13, v16")
E(f"ds_read_b128 v[8:11], v16 offset:{PB}")
E(f"ds_read_b128 v[12:15], v16 offset:{PB+64}")
E("s_waitcnt lgkmcnt(0)")
for kb in range(2):
    for half in range(2):
        tile = kb * 2 + half
        base = 64 + tile * 32
        E(f"s_waitcnt vmcnt({8*(3-tile)+(0 if LATEF else 6)})")
        for j in range(8):
            c = j // 2
            sel = S_PLO if j % 2 == 0 else S_PHI
            for p in range(4):
                E(f"v_perm_b32 v{24+j*4+p}, v{base+(2*p+1)*4+c}, v{base+(2*p)*4+c}, {sel}")
        E("s_nop 1")
        for j in range(8):
            acc = 192 + (half * 8 + j) * 4
            cc = "0" if kb == 0 else vr(acc, 4)
            E(f"v_mfma_f32_16x16x32_bf16 {vr(acc,4)}, {vr(8+kb*4,4)}, {vr(24+j*4,4)}, {cc}")
        if tile < 3:
            E("s_nop 7")
E("s_nop 7"); E("s_nop 1")
E(f"s_and_b32 s13, {S_WV}, 3")
E("s_lshl_b32 s13, s13, 11")
E("v_lshlrev_b32 v16, 5, v1")
E("v_add_u32 v16, s13, v16")
E("s_mov_b64 exec, 0xffff")
for half in range(2):
    for j in range(8):
        acc = 192 + (half * 8 + j) * 4
        E(f"ds_write_b32 v16, v{acc} offset:{ORED+half*512+j*4}")
        E(f"ds_write_b32 v16, v{acc+1} offset:{ORED+1024+half*512+j*4}")
E("s_mov_b64 exec, -1")
E("s_waitcnt lgkmcnt(0)")
E("s_barrier")
if LATEW:
    E(f"s_cmp_ge_u32 {S_WG}, {NA}")
    E("s_cbranch_scc1 L_NOWDMA")
    E("s_barrier")
    dma_group("w", wo_l, 7)
    E("s_waitcnt vmcnt(0)")
    E("s_barrier")
    E("s_branch L_END")
    E("L_NOWDMA:")
E(f"s_cmp_lt_u32 {S_WG}, {F0}")
E("s_cbranch_scc1 L_END")
E(f"s_cmp_ge_u32 {S_WG}, {F0+NFFN}")
E("s_cbranch_scc1 L_END")
dma_group("f", ff_l, 21)
E("s_waitcnt vmcnt(0)")
E("s_barrier")
E("L_END:")
if STAMP:
    stamp(12)
    E(f"s_cmp_lg_u32 {S_WV}, 0")
    E("s_cbranch_scc1 L_END2")
    E("s_mov_b64 exec, 1")
    E(f"s_lshl_b32 s13, {S_WG}, 6")
    E("s_add_u32 s13, s13, 0x800000")
    E("v_mov_b32 v16, s13")
    for i in range(13):
        E(f"v_mov_b32 v17, s{76+i}")
        E(f"global_store_dword v16, v17, {P_WS} offset:{4*i}")
        E("s_nop 1")
E("L_END2:")

header = open("cdna_kernels/" + NAME + ".s.ref").read().split("\n")
hdr = []
for l in header:
    if l.startswith("; @launch"):
        hdr.append(f"; @launch grid=(256,1,1) block=(512,1,1) lds={LDS_BYTES}")
    elif l.startswith(";"):
        hdr.append(l)
    else:
        break
txt = "\n".join(hdr) + f"""
.amdgcn_target "amdgcn-amd-amdhsa--gfx950"
.text
.globl {NAME}_kernel
.p2align 8
.type {NAME}_kernel,@function
{NAME}_kernel:
""" + "\n".join(out) + f"""
s_endpgm
.section .rodata,"a"
.p2align 6
.amdhsa_kernel {NAME}_kernel
  .amdhsa_next_free_vgpr 256
  .amdhsa_next_free_sgpr 102
  .amdhsa_accum_offset 256
  .amdhsa_group_segment_fixed_size 0
  .amdhsa_kernarg_size 96
  .amdhsa_user_sgpr_count 2
  .amdhsa_user_sgpr_kernarg_segment_ptr 1
  .amdhsa_system_sgpr_workgroup_id_x 1
.end_amdhsa_kernel
"""
dst = sys.argv[1] if len(sys.argv) > 1 else "cdna_kernels/" + NAME + ".s"
open(dst, "w").write(txt)
print("wrote", dst, len(txt))
```
